```python
import torch

def _softmax(x, axis=-1):
    return torch.softmax(x, dim=axis)
def _gelu(x):
    return torch.nn.functional.gelu(x, approximate="tanh")
def _silu(x):
    return torch.nn.functional.silu(x)
def _sigmoid(x):
    return torch.sigmoid(x)
def _layernorm(x, axis=-1, eps=1e-5):
    m = x.mean(dim=axis, keepdim=True)
    v = x.var(dim=axis, keepdim=True, unbiased=False)
    return (x - m) / torch.sqrt(v + eps)
def _scatter_add(tgt, idx, src, axis=0):
    return tgt.clone().index_add_(axis, idx, src)
def _segment_sum(src, seg, n):
    out = torch.zeros((n,) + src.shape[1:], dtype=src.dtype)
    return out.index_add_(0, seg, src)
def _pad(x, pw):
    flat = tuple(v for pair in reversed(pw) for v in pair)
    return torch.nn.functional.pad(x, flat)

kernel_name = 'standalone__window_attn_swin__vision'

def setup_inputs():

    _w = (lambda a: (lambda t: t.to(torch.bfloat16) if t.is_floating_point() else t)(torch.as_tensor(a)))
    H = W = 224
    C = 192
    ws = 7
    nh = 4
    shift = ws // 2
    coords = torch.stack(torch.meshgrid(torch.arange(ws), torch.arange(ws), indexing='ij'), 0).reshape(2, -1)
    rel = coords[:, :, None] - coords[:, None, :]
    rel[0] += ws - 1
    rel[1] += ws - 1
    rel[0] *= 2 * ws - 1
    rp_idx = rel.sum(0).to(torch.int64)
    img_mask = torch.zeros((1, H, W, 1), dtype=float)
    cnt = 0
    for hs in (slice(0, H - ws), slice(H - ws, H - shift), slice(H - shift, H)):
        for vs in (slice(0, W - ws), slice(W - ws, W - shift), slice(W - shift, W)):
            img_mask[:, hs, vs, :] = cnt
            cnt += 1
    mw = img_mask.reshape(1, H // ws, ws, W // ws, ws, 1).permute(0, 1, 3, 2, 4, 5).reshape(-1, ws * ws)
    am = mw[:, :, None] - mw[:, None, :]
    attn_mask = torch.where(am != 0, -100.0, 0.0).to(float)
    return {
        "x": _w((lambda *s: torch.randn(*s, dtype=torch.bfloat16) * 1.6)(1, H, W, C)),
        "wqkv": _w((lambda *s: torch.randn(*s, dtype=torch.bfloat16) * 1.6)(C, 3 * C) * 0.02),
        "wo": _w((lambda *s: torch.randn(*s, dtype=torch.bfloat16) * 0.05)(C, C) * 0.02),
        "rpb": _w((lambda *s: torch.randn(*s, dtype=torch.bfloat16) * 0.2)((2 * ws - 1) * (2 * ws - 1), nh)),
        "rp_idx": _w(rp_idx),
        "attn_mask": _w(attn_mask),
    }

def reference(x, wqkv, wo, rpb, rp_idx, attn_mask):
    B, H, W, C = x.shape
    N = rp_idx.shape[0]
    ws = int(round(N ** 0.5))
    nh = rpb.shape[-1]
    hd = C // nh
    shift = ws // 2
    xs = torch.roll(x, (-shift, -shift), (1, 2))
    nWh = H // ws
    nWw = W // ws
    xw = (lambda x, *d: x.permute(*d))(xs.reshape(B, nWh, ws, nWw, ws, C), 0, 1, 3, 2, 4, 5).reshape(B * nWh * nWw, N, C)
    qkv = (lambda x, *d: x.permute(*d))(torch.einsum('wnc,cd->wnd', xw, wqkv).reshape(-1, N, 3, nh, hd), 2, 0, 3, 1, 4)
    q, k, v = qkv[0], qkv[1], qkv[2]
    attn = torch.einsum('whid,whjd->whij', q, k) * (hd ** -0.5)
    bias = (lambda x, *d: x.permute(*d))(rpb[rp_idx.reshape(-1)].reshape(N, N, nh), 2, 0, 1)
    attn = attn + bias[None, :, :, :]
    attn = (attn.reshape(B, nWh * nWw, nh, N, N) + attn_mask[None, :, None, :, :]).reshape(-1, nh, N, N)
    attn = _softmax(attn, axis=-1)
    out = (lambda x, *d: x.permute(*d))(torch.einsum('whij,whjd->whid', attn, v), 0, 2, 1, 3).reshape(-1, N, C)
    out = torch.einsum('wnc,cd->wnd', out, wo)
    out = (lambda x, *d: x.permute(*d))(out.reshape(B, nWh, nWw, ws, ws, C), 0, 1, 3, 2, 4, 5).reshape(B, H, W, C)
    return torch.roll(out, (shift, shift), (1, 2))
```

```python
import heapq

class Op:
    __slots__ = ("text", "kind", "rd", "wr", "port", "A", "B", "C", "D", "dscls", "alat", "bundle",
                 "pub_w", "pub_r", "idx", "prio", "preds", "succs", "note", "size", "arr", "nodelay", "bias")
    def __init__(self, text, kind, rd=(), wr=(), port=None, **kw):
        self.text = text; self.kind = kind
        self.rd = list(rd); self.wr = list(wr)
        self.A = kw.get("A"); self.B = kw.get("B"); self.C = kw.get("C"); self.D = kw.get("D")
        self.bundle = kw.get("bundle")
        self.pub_w = kw.get("pub_w", ()); self.pub_r = kw.get("pub_r", ())
        self.alat = kw.get("alat")
        self.note = kw.get("note", "")
        self.arr = kw.get("arr")
        self.bias = kw.get("bias", 0)
        if port is None:
            port = {"mfma": 8, "valu": 4, "trans": 8, "salu": 0, "bar": 0, "wait": 0, "nop": 0}.get(kind, 4)
        self.port = port
        self.preds = []; self.succs = []

def V(i, n=1): return [f"v{i+k}" for k in range(n)]
def Areg(i, n=1): return [f"a{i+k}" for k in range(n)]
def S(i, n=1): return [f"s{i+k}" for k in range(n)]
def vt(i, n=1): return f"v{i}" if n == 1 else f"v[{i}:{i+n-1}]"
def at(i, n=1): return f"a{i}" if n == 1 else f"a[{i}:{i+n-1}]"
def st(i, n=1): return f"s{i}" if n == 1 else f"s[{i}:{i+n-1}]"
class R:
    def __init__(self, cls, i, n=1): self.cls = cls; self.i = i; self.n = n
    def t(self): return (vt if self.cls == "v" else at)(self.i, self.n)
    def regs(self): return [f"{self.cls}{self.i+k}" for k in range(self.n)]
    def sub(self, o, n=1): return R(self.cls, self.i + o, n)
    def __repr__(self): return self.t()
def v(i, n=1): return R("v", i, n)
def a(i, n=1): return R("a", i, n)

VALU_KINDS = ("valu", "trans")
DS_KINDS = ("dsr", "dsw")
VM_KINDS = ("vld", "vst", "dma")
def is_tok(r): return r.startswith("L:")

class Prog:
    def __init__(self): self.ops = []
    def add(self, op): self.ops.append(op); return op
    def salu(self, text, rd=(), wr=(), **kw): return self.add(Op(text, "salu", rd, wr, **kw))
    def valu(self, opc, dst, srcs, kind="valu", extra_rd=(), extra_wr=(), tail="", **kw):
        rd = list(extra_rd); wr = list(extra_wr); ts = []
        for s_ in srcs:
            if isinstance(s_, R): rd += s_.regs(); ts.append(s_.t())
            else:
                s_ = str(s_); ts.append(s_)
                base = s_.lstrip("-")
                if base.startswith("s") and base[1:2].isdigit(): rd.append(base)
                elif base.startswith("s["):
                    lo, hi = base[2:-1].split(":"); rd += [f"s{k}" for k in range(int(lo), int(hi)+1)]
                elif base == "vcc": rd.append("vcc")
                elif base.startswith("v") and base[1:2].isdigit(): rd.append(base)
        if isinstance(dst, R): wr += dst.regs(); dt = dst.t()
        else:
            dt = str(dst)
            if dt == "vcc": wr.append("vcc")
            elif dt.startswith("s["):
                lo, hi = dt[2:-1].split(":"); wr += [f"s{k}" for k in range(int(lo), int(hi)+1)]
            elif dt.startswith("s"): wr.append(dt)
        return self.add(Op(f"{opc} {dt}, " + ", ".join(ts) + tail, kind, rd, wr, **kw))
    def mfma(self, D, A_, B_, C, **kw):
        rd = A_.regs() + B_.regs() + (C.regs() if isinstance(C, R) else [])
        ct = C.t() if isinstance(C, R) else str(C)
        return self.add(Op(f"v_mfma_f32_16x16x32_bf16 {D.t()}, {A_.t()}, {B_.t()}, {ct}", "mfma", rd, D.regs(),
                           A=A_.regs(), B=B_.regs(), C=(C.regs() if isinstance(C, R) else []), D=D.regs(), **kw))
    def dsr(self, opc, dst, addr, off, toks, **kw):
        assert 0 <= off < 65536, off
        return self.add(Op(f"{opc} {dst.t()}, {addr.t()}" + (f" offset:{off}" if off else ""), "dsr",
                           addr.regs() + list(toks) + ["exec"], dst.regs(), port=4, **kw))
    def dsw(self, opc, addr, data, off, toks, **kw):
        assert 0 <= off < 65536, off
        return self.add(Op(f"{opc} {addr.t()}, {data.t()}" + (f" offset:{off}" if off else ""), "dsw",
                           addr.regs() + data.regs() + ["exec"], list(toks), port=4 * (1 + data.n), **kw))

def lat_ws(p, c, reg, typ):
    pk, ck = p.kind, c.kind
    if is_tok(reg) or reg in ("scc", "m0", "exec") or reg.startswith("s") or reg == "vcc":
        if typ == "raw":
            if reg == "m0": return (4, 1 if ck == "dma" else 0)
            if pk in VALU_KINDS:
                if ck in VM_KINDS: return (24, 5)
                if ck in VALU_KINDS: return (12, 2)
                if ck == "salu": return (16, 2)
                return (8, 1)
        return (0, 0)
    if typ == "raw":
        if pk == "mfma":
            if ck == "mfma":
                if reg in c.C and c.C == p.D and reg not in c.A and reg not in c.B: return (16, 0)
                if reg in c.A or reg in c.B: return (36, 8)
                return (28, 6)
            return (36, 8)
        if pk in VALU_KINDS:
            if ck == "mfma": return (8, 2)
            if ck in VALU_KINDS:
                if "permlane" in c.text: return (12, 2)
                if "readfirstlane" in c.text or "readlane" in c.text: return (8, 1)
                if "_dpp" in c.text or "row_" in c.text: return (12, 2)
                if pk == "trans": return (12, 1)
                return (4, 0)
            return (12, 0)
        return (0, 0)
    if typ == "waw":
        if pk == "mfma":
            if ck == "mfma": return (16, 0) if c.D == p.D else (28, 6)
            return (36, 8)
        return (0, 0)
    if typ == "war":
        if pk == "mfma" and reg in p.C and ck in VALU_KINDS: return (16, 3)
        if pk == "vst" and p.port >= 16 and not is_tok(reg):
            return (12, 2)
        return (0, 0)
    return (0, 0)

def build_deps(ops):
    last_w = {}; readers = {}
    for i, op in enumerate(ops):
        op.idx = i; op.preds = []; op.succs = []
    for i, op in enumerate(ops):
        dep = {}
        def add(j, reg, typ):
            if j == i: return
            l, w = lat_ws(ops[j], op, reg, typ)
            o = dep.get(j, (0, 0)); dep[j] = (max(o[0], l), max(o[1], w))
        for r in op.rd:
            if r in last_w: add(last_w[r], r, "raw")
        for r in op.wr:
            if r in last_w: add(last_w[r], r, "waw")
            for j in readers.get(r, ()): add(j, r, "war")
        for r in op.rd: readers.setdefault(r, []).append(i)
        for r in op.wr:
            last_w[r] = i; readers[r] = []
        op.preds = [(j, l, w) for j, (l, w) in dep.items()]
        for j, l, w in op.preds: ops[j].succs.append((i, l, w))

class Emitter:
    def __init__(self):
        self.out = []
        self.n_lg = 0; self.done_lg = 0
        self.n_vm = 0; self.done_vm = 0
        self.pend_w = {}
        self.pend_r = {}
        self.lg_time = []; self.vm_time = []
        self.count = 0
        self.pos = {}
    def needs(self, op):
        lg = -1; vm = -1
        def req(e):
            nonlocal lg, vm
            if e is None: return
            cls, seq = e
            if cls == "lg":
                if seq >= self.done_lg: lg = max(lg, seq)
            elif seq >= self.done_vm: vm = max(vm, seq)
        isds = op.kind in DS_KINDS
        for r in op.rd:
            e = self.pend_w.get(r)
            if e is None: continue
            if is_tok(r) and isds and e[0] == "lg": continue
            if op.kind == "bar": continue
            req(e)
        for r in op.wr:
            e = self.pend_w.get(r)
            if e is not None and op.kind != "bar":
                same = (e[0] == "lg" and isds) or (e[0] == "vm" and op.kind in VM_KINDS)
                if not same: req(e)
            if is_tok(r) and op.kind != "bar":
                e = self.pend_r.get(r)
                if e is not None and not isds: req(e)
        if op.kind == "bar":
            for r in op.pub_w: req(self.pend_w.get(r))
            for r in op.pub_r: req(self.pend_r.get(r))
        return lg, vm
    def emit_wait(self, lg, vm):
        parts = []
        if vm >= 0:
            n = min(63, self.n_vm - 1 - vm); parts.append(f"vmcnt({n})"); self.done_vm = max(self.done_vm, self.n_vm - n)
        if lg >= 0:
            n = min(15, self.n_lg - 1 - lg); parts.append(f"lgkmcnt({n})"); self.done_lg = max(self.done_lg, self.n_lg - n)
        if parts:
            self.out.append(("s_waitcnt " + " ".join(parts), None)); self.count += 1
            return True
        return False
    def nops(self, n):
        while n > 0:
            k = min(n, 16); self.out.append((f"s_nop {k-1}", None)); self.count += k; n -= k
    def emit(self, op, t=0):
        texts = op.bundle if op.bundle else [op.text]
        for x in texts: self.out.append((x, op))
        self.pos[op.idx] = self.count + len(texts) - 1
        self.count += len(texts)
        if op.kind in DS_KINDS:
            seq = self.n_lg; self.n_lg += (op.alat[1] if isinstance(op.alat, tuple) else 1); seq = self.n_lg - 1
            self.lg_time.append(t)
            while len(self.lg_time) < self.n_lg: self.lg_time.append(t)
            if op.kind == "dsr":
                for r in op.wr: self.pend_w[r] = ("lg", seq)
                for r in op.rd:
                    if is_tok(r): self.pend_r[r] = ("lg", seq)
            else:
                for r in op.wr: self.pend_w[r] = ("lg", seq)
        elif op.kind in VM_KINDS:
            seq = self.n_vm; self.n_vm += 1
            self.vm_time.append(t)
            if op.kind in ("vld", "dma"):
                for r in op.wr:
                    if is_tok(r) or (r[0] in "va" and r[1:].isdigit()): self.pend_w[r] = ("vm", seq)
        else:
            for r in op.wr:
                if r in self.pend_w and op.kind != "bar": del self.pend_w[r]

def ws_short(em, ops, op):
    need = 0
    for j, l, w in op.preds:
        if w:
            d = em.count - em.pos[j] - 1
            if w - d > need: need = w - d
    return need

def linear(ops, em=None):
    build_deps(ops)
    em = em or Emitter()
    for op in ops:
        lg, vm = em.needs(op)
        em.emit_wait(lg, vm)
        n = ws_short(em, ops, op)
        if n > 0: em.nops(n)
        em.emit(op)
    return em

L_DS = 128
L_DSW = 96

def schedule(ops, em=None, verbose=False, t0=0, lds_lat=L_DS):
    build_deps(ops)
    n = len(ops)
    em = em or Emitter()
    h = [0] * n
    for i in range(n - 1, -1, -1):
        op = ops[i]
        own = {"mfma": 16, "trans": 8}.get(op.kind, 4)
        best = own
        for j, l, w in op.succs:
            ll = max(l, own)
            if op.kind == "dsr" and l == 0 and any(r in ops[j].rd for r in op.wr): ll = lds_lat
            if op.kind in ("dma", "vld") and op.alat and any(r in ops[j].rd for r in op.wr): ll = op.alat
            if h[j] + ll > best: best = h[j] + ll
        h[i] = best
    for i in range(n): ops[i].prio = h[i] + ops[i].bias
    npred = [len(op.preds) for op in ops]
    rt = [t0] * n
    ready = [i for i in range(n) if npred[i] == 0]
    t = t0; port_free = t0; pipe_free = t0; last_valu = -100; shadow = False
    vm_last_arr = t0
    done_t = {}
    times = [0] * n
    stat = dict(mfma=0, idle_pipe=0, waits=0, nops=0)
    def avail(op):
        return rt[op.idx]
    nsched = 0
    def issue_time(op):
        k = op.kind
        e = max(t, rt[op.idx])
        if k == "mfma": return max(e, pipe_free, port_free)
        if k in ("salu", "bar", "wait"): return e
        e = max(e, port_free)
        if k in DS_KINDS or k in VM_KINDS: e = max(e, last_valu + 12)
        return e
    while nsched < n:
        cand = [i for i in ready]
        mf = [i for i in cand if ops[i].kind == "mfma" and ws_short(em, ops, ops[i]) <= 0]
        best_m = None
        if mf:
            tm = min(issue_time(ops[i]) for i in mf)
            mm = [i for i in mf if issue_time(ops[i]) <= tm + 0]
            best_m = max(mm, key=lambda i: ops[i].prio)
            tm = issue_time(ops[best_m])
        pick = None
        others = [i for i in cand if ops[i].kind != "mfma"]
        if others:
            def fits(i):
                op = ops[i]
                if ws_short(em, ops, op) > 0: return False
                ti = issue_time(op)
                if best_m is None: return True
                if op.kind in ("salu", "bar"): return ti + 4 <= tm or (shadow and ti <= t)
                extra = 0
                lg, vm = em.needs(op)
                if lg >= 0 or vm >= 0: extra = 0 if shadow else 4
                return ti + extra + op.port <= tm
            f = [i for i in others if fits(i)]
            if f:
                if best_m is None:
                    tmin = min(issue_time(ops[i]) for i in f)
                    f2 = [i for i in f if issue_time(ops[i]) <= tmin + 4]
                    pick = max(f2, key=lambda i: ops[i].prio)
                else:
                    pick = max(f, key=lambda i: (ops[i].prio))
            elif best_m is not None:
                if shadow:
                    big = [i for i in others if ops[i].port > 8 and ws_short(em, ops, ops[i]) <= 0 and issue_time(ops[i]) <= max(t, port_free) and rt[i] <= t]
                    if big:
                        b = max(big, key=lambda i: ops[i].prio)
                        if ops[b].prio >= ops[best_m].prio - 400 or ops[b].kind in ("dsw", "vst"): pick = b
        if pick is None and best_m is not None: pick = best_m
        if pick is None:
            need = min(ws_short(em, ops, ops[i]) for i in cand)
            assert need > 0
            em.nops(1); stat["nops"] += 1; t += 4; shadow = False
            continue
        op = ops[pick]
        lg, vm = em.needs(op)
        ti = issue_time(op)
        if lg >= 0 or vm >= 0:
            em.emit_wait(lg, vm); stat["waits"] += 1
            if not shadow: ti = max(ti, t + 4)
            shadow = False
            if ws_short(em, ops, op) > 0: em.nops(ws_short(em, ops, op))
        k = op.kind
        ntext = len(op.bundle) if op.bundle else 1
        em.emit(op, ti)
        times[pick] = ti
        if k == "mfma":
            stat["mfma"] += 1; stat["idle_pipe"] += max(0, ti - pipe_free) if stat["mfma"] > 1 else 0
            pipe_free = ti + 16; port_free = ti + 8; t = ti + 4; shadow = True
        elif k in ("salu", "bar", "wait"):
            t = max(ti, t) + 4 * ntext; shadow = False
            if k == "bar": t += 24
        else:
            extra = 4 * (ntext - 1)
            port_free = ti + op.port + extra; t = ti + 4 + extra; shadow = False
            if k in VALU_KINDS: last_valu = ti; t = ti + op.port
            else: t = max(t, ti + op.port + extra)
        ready.remove(pick); nsched += 1
        for j, l, w in op.succs:
            c = ops[j]; e = ti + l
            if k == "dsr" and any(r in c.rd or r in c.wr for r in op.wr): e = ti + lds_lat
            if k == "dsr" and c.kind in ("bar", "dma") : e = max(e, ti + lds_lat)
            if k == "dsw" and c.kind == "bar": e = ti + L_DSW
            if k in ("dma", "vld"):
                if j_is_consumer(op, c):
                    arr = op.arr if op.arr is not None else None
                    e = max(e, ti + (op.alat or 600))
                    if arr is not None: e = max(e, arr)
            if e > rt[j]: rt[j] = e
            npred[j] -= 1
            if npred[j] == 0: ready.append(j)
        if shadow:
            lgs = em.done_lg
            while lgs < em.n_lg and em.lg_time[lgs] + lds_lat <= t + 8: lgs += 1
            wanted = False
            if lgs > em.done_lg:
                for i in ready:
                    l2, v2 = em.needs(ops[i])
                    if l2 >= 0 and l2 < lgs: wanted = True; break
            if wanted:
                em.emit_wait(lgs - 1, -1); stat["waits"] += 1
                shadow = False; t += 0
    end = max(t, pipe_free, port_free)
    if verbose: print(f"; schedule: est {end - t0} cycles, {stat}")
    return em, end, times

def j_is_consumer(p, c):
    return any((r in c.rd) or (c.kind == "bar" and r in c.pub_w) for r in p.wr)
```

```python
import sys, math, struct
from ir import *

def f32(x): return struct.unpack("<I", struct.pack("<f", x))[0]
def bf16_rne(x):
    u = f32(x); return ((u + 0x7fff + ((u >> 16) & 1)) >> 16) & 0xffff
def bf16_val(h): return struct.unpack("<f", struct.pack("<I", h << 16))[0]
LOG2E = 1.4426950408889634
CSC = (48 ** -0.5) * LOG2E
MASK = -100.0 * LOG2E
MHI = bf16_rne(MASK); MLO = bf16_rne(MASK - bf16_val(MHI))
MASKPK = MHI | (MLO << 16)
NEG = f32(-1.0e30)
ROWB = 224 * 384
OOB = 0x40000000

XB = [0, 18432]
BIAS = 36864; BIAS_H = 9728
RPB = BIAS + 4 * BIAS_H
OE = RPB + 3072
OB = [OE + 6144, OE + 6144 + 18432]
XE = OB[1]
RING = OB[1] + 6144
NRING = 4
LDS_TOTAL = RING + 4 * NRING * 3072
assert LDS_TOTAL <= 163840

sX, sW, sWo, sR, sO = 20, 24, 28, 32, 36
sH, sWH, sWQ, sC, sL2E = 40, 41, 42, 43, 44
sMA, sMB, sMH, sRING = 45, 46, 47, 48
sHM = 50
sWOFF = 52
sWOFB = 56
sT = 60

vXe, vXo, vOr, vOw4, vOw2, vB, vBq, vBE = range(0, 8)
vDa, vDb, vD2, vWrap = 8, 9, 10, 11
vSt = 12
vYq = 15
vLmin, vLmax = 17, 18
vSpare = 19
vONE = 20
vK = 24
vQ = 56
vV = 80
vS = 104
vKVa = 136
vKVb = 160
vOA = 184
vXF = 200
vOF = 212
vWoV = 224

def Wk(s, j): return a(0 + (s * 3 + j) * 4, 4)
def Wv(s, j): return a(72 + (s * 3 + j) * 4, 4)
def Wq(s, j): return a(144 + (s * 3 + j) * 4, 4)
def Wo(s, j):
    f = s * 3 + j
    return a(216 + 4 * f, 4) if f < 10 else v(vWoV + 4 * (f - 10), 4)

class K:
    def __init__(self, opts):
        self.o = opts
        self.pre = Prog(); self.p = Prog()
        self.xf_i = 0; self.of_i = 0
        self.dbg_n = 0

    def tok_ri_ci(self, P, j, ri, ci, tmp):
        P.valu("v_mul_u32_u24", ri, ["37", j]); P.valu("v_lshrrev_b32", ri, ["8", ri])
        P.valu("v_mul_u32_u24", tmp, ["7", ri]); P.valu("v_sub_u32", ci, [j, tmp])
    def tok_off(self, P, dst, ri, ci, t1, t2):
        P.valu("v_add_u32", t1, [f"s{sT}", ri])
        P.valu("v_subrev_u32", t2, ["224", t1])
        P.valu("v_min_u32", t1, [t1, t2])
        P.valu("v_mul_u32_u24", dst, [f"s{sT+2}", t1])
        P.valu("v_add_u32", t1, [f"s{sT+1}", ci])
        P.valu("v_mul_u32_u24", t1, ["384", t1])
        P.valu("v_add_u32", dst, [dst, t1])
    def set_flag(self, P, bit, cond_vcc_ops, tmp):
        for f in cond_vcc_ops: f()
        P.valu("v_mov_b32", tmp, [str(1 << bit) if bit <= 6 else hex(1 << bit)])
        P.valu("v_cndmask_b32", tmp, ["0", tmp, "vcc"])
        P.valu("v_or_b32", v(vWrap), [v(vWrap), tmp])

    def entry(self):
        P = self.pre; o = self.o
        P.salu("s_load_dwordx8 s[8:15], s[0:1], 0", wr=S(8, 8))
        P.salu("s_load_dwordx2 s[16:17], s[0:1], 48", wr=S(16, 2))
        if o.get("dump"): P.salu("s_load_dwordx2 s[18:19], s[0:1], 64", wr=S(18, 2))
        if o.get("codepf", 1):
            P.add(Op("s_getpc_b64 s[70:71]", "salu", [], S(70, 2), bundle=["s_getpc_b64 s[70:71]", "L_pc:"]))
            P.valu("v_lshlrev_b32", v(200), ["7", v(0)])
            P.valu("v_min_u32", v(202), ["L_codeend-L_pc-4", v(200)])
            P.add(Op("global_load_dword v201, v202, s[70:71]", "vld", V(202) + S(70, 2), V(201)))
            P.valu("v_add_u32", v(200), ["0x8000", v(200)])
            P.valu("v_min_u32", v(202), ["L_codeend-L_pc-4", v(200)])
            P.add(Op("global_load_dword v203, v202, s[70:71]", "vld", V(202) + S(70, 2), V(203)))
        L, N, G, T1, T2, T3, RI, CI = [v(i) for i in range(104, 112)]
        self.L, self.N, self.G = L, N, G
        P.valu("v_lshrrev_b32", T1, ["6", v(0)])
        P.valu("v_and_b32", L, ["63", v(0)])
        P.valu("v_readfirstlane_b32", f"s{sH}", [T1])
        P.valu("v_and_b32", N, ["15", L]); P.valu("v_lshrrev_b32", G, ["4", L])
        P.salu(f"s_lshr_b32 s{sWH}, s2, 3", rd=["s2"], wr=[f"s{sWH}", "scc"])
        P.salu(f"s_and_b32 s{sWQ}, s2, 7", rd=["s2"], wr=[f"s{sWQ}", "scc"])
        P.salu(f"s_mul_i32 s{sT}, s{sWH}, 7", rd=[f"s{sWH}"], wr=[f"s{sT}"])
        P.salu(f"s_add_u32 s{sT}, s{sT}, 3", rd=[f"s{sT}"], wr=[f"s{sT}", "scc"])
        P.salu(f"s_mul_i32 s{sT+1}, s{sWQ}, 28", rd=[f"s{sWQ}"], wr=[f"s{sT+1}"])
        P.salu(f"s_add_u32 s{sT+1}, s{sT+1}, 3", rd=[f"s{sT+1}"], wr=[f"s{sT+1}", "scc"])
        P.salu(f"s_mov_b32 s{sT+2}, {ROWB}", wr=[f"s{sT+2}"])
        P.salu(f"s_mov_b32 s{sC}, {hex(f32(CSC))}", wr=[f"s{sC}"])
        P.salu(f"s_mov_b32 s{sL2E}, {hex(f32(LOG2E))}", wr=[f"s{sL2E}"])
        for t in range(4): P.salu(f"s_mov_b32 s{sWOFF+t}, {2688*t}", wr=[f"s{sWOFF+t}"])
        h = f"s{sH}"
        P.salu(f"s_and_b32 s{sT+3}, {h}, 1", rd=[h], wr=[f"s{sT+3}", "scc"])
        P.salu(f"s_lshr_b32 s{sT+4}, {h}, 1", rd=[h], wr=[f"s{sT+4}", "scc"])
        P.salu(f"s_mul_i32 s{sMA}, s{sT+4}, 6144", rd=[f"s{sT+4}"], wr=[f"s{sMA}"])
        P.salu(f"s_lshl_b32 s{sT+5}, s{sT+3}, 10", rd=[f"s{sT+3}"], wr=[f"s{sT+5}", "scc"])
        P.salu(f"s_add_u32 s{sMA}, s{sMA}, s{sT+5}", rd=[f"s{sMA}", f"s{sT+5}"], wr=[f"s{sMA}", "scc"])
        P.salu(f"s_lshl_b32 s{sT+5}, s{sT+4}, 10", rd=[f"s{sT+4}"], wr=[f"s{sT+5}", "scc"])
        P.salu(f"s_add_u32 s{sMH}, s{sT+5}, {12288 + 2048 - 128}", rd=[f"s{sT+5}"], wr=[f"s{sMH}", "scc"])
        P.salu(f"s_lshl_b32 s{sT+6}, s{sT+3}, 12", rd=[f"s{sT+3}"], wr=[f"s{sT+6}", "scc"])
        P.salu(f"s_add_u32 s{sMB}, s{sT+5}, s{sT+6}", rd=[f"s{sT+5}", f"s{sT+6}"], wr=[f"s{sMB}", "scc"])
        P.salu(f"s_add_u32 s{sMB}, s{sMB}, 12288", rd=[f"s{sMB}"], wr=[f"s{sMB}", "scc"])
        P.salu(f"s_lshl_b32 s{sT+6}, s{sT+3}, 8", rd=[f"s{sT+3}"], wr=[f"s{sT+6}", "scc"])
        for t in range(4):
            P.salu(f"s_add_u32 s{sWOFB+t}, s{sT+6}, {2688*t}", rd=[f"s{sT+6}"], wr=[f"s{sWOFB+t}", "scc"])
        P.salu(f"s_sub_u32 s{sHM+1}, 0, s{sT+3}", rd=[f"s{sT+3}"], wr=[f"s{sHM+1}", "scc"])
        P.salu(f"s_not_b32 s{sHM}, s{sHM+1}", rd=[f"s{sHM+1}"], wr=[f"s{sHM}", "scc"])
        P.salu(f"s_mul_i32 s{sRING}, {h}, {NRING*3072}", rd=[h], wr=[f"s{sRING}"])
        P.salu(f"s_add_u32 s{sRING}, s{sRING}, {RING}", rd=[f"s{sRING}"], wr=[f"s{sRING}", "scc"])
        P.salu("s_waitcnt lgkmcnt(0)", rd=S(8, 8) + S(16, 2), wr=S(8, 8) + S(16, 4))
        def srd(d, p, n):
            P.salu(f"s_mov_b32 s{d}, s{p}", rd=[f"s{p}"], wr=[f"s{d}"])
            P.salu(f"s_and_b32 s{d+1}, s{p+1}, 0xffff", rd=[f"s{p+1}"], wr=[f"s{d+1}", "scc"])
            P.salu(f"s_mov_b32 s{d+2}, {n}", wr=[f"s{d+2}"])
            P.salu(f"s_mov_b32 s{d+3}, 0x20000", wr=[f"s{d+3}"])
        srd(sR, 14, 1352); srd(sW, 10, 221184); srd(sWo, 12, 73728); srd(sX, 8, 19267584); srd(sO, 16, 19267584)
        if o.get("dump"): srd(80, 18, 1 << 28)

    def setup(self):
        P = self.p; o = self.o
        L, N, G = self.L, self.N, self.G
        T1, T2, T3, RI, CI, J, T4, T5 = [v(i) for i in (107, 108, 109, 110, 111, 112, 113, 114)]
        h = f"s{sH}"
        RP = [v(116), v(117), v(118)]
        P.valu("v_lshlrev_b32", T1, ["3", L])
        P.salu(f"s_lshl_b32 s{sT+7}, {h}, 1", rd=[h], wr=[f"s{sT+7}", "scc"])
        for i in range(3):
            P.add(Op(f"buffer_load_ushort {RP[i].t()}, {T1.t()}, s[{sR}:{sR+3}], s{sT+7} offen offset:{512*i}", "vld",
                     T1.regs() + S(sR, 4) + [f"s{sT+7}", "exec"], RP[i].regs(), alat=2200, bias=5000))
        if o.get("touch", 1):
            P.valu("v_lshlrev_b32", T2, ["5", v(0)])
            P.valu("v_add_u32", T2, [f"s{sWH}", T2])
            P.valu("v_lshlrev_b32", T2, ["7", T2])
            P.add(Op(f"buffer_load_dword v119, {T2.t()}, s[{sW}:{sW+3}], 0 offen", "vld", T2.regs() + S(sW, 4) + ["exec"], V(119), bias=6000))
            P.add(Op(f"buffer_load_dword v120, {T2.t()}, s[{sWo}:{sWo+3}], 0 offen", "vld", T2.regs() + S(sWo, 4) + ["exec"], V(120), bias=6000))
        if o.get("dump"):
            P.salu("s_lshl_b32 s85, s2, 2", rd=["s2"], wr=["s85", "scc"])
            P.salu(f"s_add_u32 s85, s85, {h}", rd=["s85", h], wr=["s85", "scc"])
            P.salu("s_lshl_b32 s85, s85, 16", rd=["s85"], wr=["s85", "scc"])
            P.valu("v_lshlrev_b32", v(DBGA), ["2", L]); P.valu("v_add_u32", v(DBGA), ["s85", v(DBGA)])
        P.valu("v_mov_b32", v(vWrap), ["0"])
        P.salu(f"s_cmp_eq_u32 s{sWQ}, 7", rd=[f"s{sWQ}"], wr=["scc"])
        P.salu(f"s_cselect_b32 s{sT+8}, 4, 64", rd=["scc"], wr=[f"s{sT+8}"])
        thr = f"s{sT+8}"
        LH, LL = v(121), v(122)
        P.valu("v_lshrrev_b32", LH, ["3", L]); P.valu("v_and_b32", LL, ["7", L])
        def dma_off(dst, tt_expr, hf_s, bit):
            NN = T4
            P.salu(f"s_lshl_b32 s{sT+9}, {hf_s}, 3", rd=[hf_s], wr=[f"s{sT+9}", "scc"])
            P.valu("v_add_u32", NN, [f"s{sT+9}", LH])
            tt_expr(J, NN)
            self.tok_ri_ci(P, J, RI, CI, T1)
            self.tok_off(P, dst, RI, CI, T1, T2)
            P.valu("v_bfe_u32", T1, [NN, "1", "3"])
            P.valu("v_xor_b32", T1, [T1, LL])
            P.valu("v_lshl_add_u32", dst, [T1, "4", dst])
            self.set_flag(P, bit, [lambda: P.valu("v_cmp_le_u32", "vcc", [thr, CI])], T1)
        def ttA(J_, NN):
            P.salu(f"s_lshl_b32 s{sT+9}, s{sT+4}, 4", rd=[f"s{sT+4}"], wr=[f"s{sT+9}", "scc"])
            P.valu("v_add_u32", J_, [f"s{sT+9}", NN])
        def ttB(J_, NN): P.valu("v_add_u32", J_, ["32", NN])
        dma_off(v(vDa), ttA, f"s{sT+3}", 0)
        dma_off(v(vDb), ttB, f"s{sT+4}", 1)
        XEo = [v(123), v(124)]
        P.salu(f"s_min_u32 s{sT+9}, {h}, 2", rd=[h], wr=[f"s{sT+9}", "scc"])
        P.salu(f"s_add_u32 s{sT+10}, s{sT}, 6", rd=[f"s{sT}"], wr=[f"s{sT+10}", "scc"])
        P.salu(f"s_cmp_ge_u32 s{sT+10}, 224", rd=[f"s{sT+10}"], wr=["scc"])
        P.salu(f"s_cselect_b32 s{sT+11}, 224, 0", rd=["scc"], wr=[f"s{sT+11}"])
        P.salu(f"s_sub_u32 s{sT+10}, s{sT+10}, s{sT+11}", rd=[f"s{sT+10}", f"s{sT+11}"], wr=[f"s{sT+10}", "scc"])
        P.salu(f"s_mul_i32 s{sT+10}, s{sT+10}, {ROWB}", rd=[f"s{sT+10}"], wr=[f"s{sT+10}"])
        P.salu(f"s_lshl_b32 s{sT+11}, s{sT+9}, 7", rd=[f"s{sT+9}"], wr=[f"s{sT+11}", "scc"])
        P.salu(f"s_add_u32 s{sT+11}, s{sT+11}, s{sT+10}", rd=[f"s{sT+11}", f"s{sT+10}"], wr=[f"s{sT+11}", "scc"])
        def ecol(dst, w_reg):
            P.valu("v_mul_u32_u24", dst, ["7", w_reg])
            P.valu("v_add_u32", dst, [f"s{sT+1}", dst]); P.valu("v_add_u32", dst, ["6", dst])
            P.valu("v_subrev_u32", T3, ["224", dst]); P.valu("v_min_u32", dst, [dst, T3])
            P.valu("v_mul_u32_u24", dst, ["384", dst])
        for hf in range(2):
            NN = T4
            P.valu("v_add_u32", NN, [str(8 * hf), LH])
            P.valu("v_lshrrev_b32", T1, ["2", NN])
            ecol(T2, T1)
            P.valu("v_add_u32", T2, [f"s{sT+11}", T2])
            P.valu("v_bfe_u32", T1, [NN, "1", "3"]); P.valu("v_xor_b32", T1, [T1, LL])
            P.valu("v_lshl_add_u32", T2, [T1, "4", T2])
            P.valu("v_and_b32", T1, ["3", NN])
            P.valu("v_cmp_eq_u32", "vcc", ["0", T1])
            P.valu("v_mov_b32", T1, [hex(OOB)])
            P.valu("v_cndmask_b32", XEo[hf], [T1, T2, "vcc"])
        P.salu(f"s_lshl_b32 s{sT+9}, s{sT+9}, 11", rd=[f"s{sT+9}"], wr=[f"s{sT+9}", "scc"])
        for hf in range(2):
            self.dma(f"s_add_u32 m0, s{sT+9}, {XE + 1024*hf}", [f"s{sT+9}"], XEo[hf], sX, "0", 0, "L:xe", alat=2400, bias=7000)
        self.x_dma(0, alat=2400, bias=7000)
        WQ = [v(vOF + i) for i in range(3)]; WA = [v(vOF + 3 + i) for i in range(3)]; WB = [v(vOF + 6 + i) for i in range(3)]
        self.WQ, self.WA, self.WB = WQ, WA, WB
        P.salu(f"s_mul_i32 s{sT+9}, {h}, 96", rd=[h], wr=[f"s{sT+9}"])
        P.salu(f"s_mov_b32 s{sT+10}, 0x2AAAAAAB", wr=[f"s{sT+10}"])
        for i in range(3):
            Q_, Pp, U = T1, T2, T3
            P.valu("v_add_u32", Q_, [str(64 * i) if 64 * i <= 64 else hex(64 * i), L])
            P.valu("v_mul_hi_u32", Pp, [Q_, f"s{sT+10}"])
            P.valu("v_mul_u32_u24", U, ["6", Pp]); P.valu("v_sub_u32", U, [Q_, U])
            P.valu("v_lshlrev_b32", U, ["4", U]); P.valu("v_add_u32", U, [f"s{sT+9}", U])
            P.valu("v_bfe_u32", T4, [Pp, "2", "2"]); P.valu("v_lshlrev_b32", T4, ["3", T4])
            P.valu("v_lshrrev_b32", T5, ["4", Pp]); P.valu("v_lshl_add_u32", T4, [T5, "2", T4])
            P.valu("v_and_b32", Q_, ["3", Pp]); P.valu("v_add_u32", T4, [T4, Q_])
            P.valu("v_mul_u32_u24", T4, ["0x480", T4]); P.valu("v_add_u32", WQ[i], [T4, U])
            P.valu("v_mul_u32_u24", T4, ["0x180", Pp]); P.valu("v_add_u32", WA[i], [T4, U])
            P.valu("v_mul_u32_u24", T5, ["0x3000", T5])
            P.valu("v_add_u32", WB[i], [WA[i], T5])
        TR1, TR2 = v(vOF + 9), v(vOF + 10)
        self.TR1, self.TR2 = TR1, TR2
        P.valu("v_bfe_u32", T1, [L, "2", "2"])
        P.valu("v_lshl_add_u32", T1, [G, "2", T1])
        P.valu("v_mul_u32_u24", T1, ["0x60", T1])
        P.valu("v_add_u32", T1, [f"s{sRING}", T1])
        P.valu("v_and_b32", T2, ["3", L])
        P.valu("v_lshl_add_u32", TR1, [T2, "3", T1]); P.valu("v_lshl_add_u32", TR2, [T2, "4", T1])
        self.slots = []
        order = o.get("worder", "kvqo")
        for m in order:
            for s in range(6): self.slots.append((m, s))
        self.dma_n = 0
        for k in range(NRING): self.w_dma(k)
        self.x_dma(1, alat=3000, bias=0)
        P.valu("v_bfe_u32", T1, [N, "1", "3"]); P.valu("v_xor_b32", T1, [T1, G])
        P.valu("v_lshlrev_b32", T1, ["4", T1]); P.valu("v_lshl_add_u32", v(vXe), [N, "7", T1])
        P.valu("v_xor_b32", v(vXo), ["64", v(vXe)])
        P.valu("v_lshlrev_b32", T5, ["4", L])
        P.valu("v_add_u32", v(vOr), [hex(OE), T5])
        P.salu(f"s_lshl_b32 s{sT+9}, {h}, 10", rd=[h], wr=[f"s{sT+9}", "scc"])
        P.valu("v_add_u32", v(vOw4), [f"s{sT+9}", v(vOr)])
        P.salu(f"s_lshl_b32 s{sT+9}, s{sT+4}, 10", rd=[f"s{sT+4}"], wr=[f"s{sT+9}", "scc"])
        P.salu(f"s_lshl_b32 s{sT+10}, s{sT+3}, 3", rd=[f"s{sT+3}"], wr=[f"s{sT+10}", "scc"])
        P.salu(f"s_add_u32 s{sT+9}, s{sT+9}, s{sT+10}", rd=[f"s{sT+9}", f"s{sT+10}"], wr=[f"s{sT+9}", "scc"])
        P.salu(f"s_add_u32 s{sT+9}, s{sT+9}, 4096", rd=[f"s{sT+9}"], wr=[f"s{sT+9}", "scc"])
        P.valu("v_add_u32", v(vOw2), [f"s{sT+9}", v(vOr)])
        P.salu(f"s_mul_i32 s{sT+9}, {h}, {BIAS_H}", rd=[h], wr=[f"s{sT+9}"])
        P.salu(f"s_add_u32 s{sT+9}, s{sT+9}, {BIAS}", rd=[f"s{sT+9}"], wr=[f"s{sT+9}", "scc"])
        P.salu(f"s_mov_b32 s49, s{sT+9}", rd=[f"s{sT+9}"], wr=["s49"])
        P.valu("v_add_u32", v(vB), ["s49", T5])
        P.valu("v_lshlrev_b32", T1, ["4", G]); P.valu("v_add_u32", T1, ["s49", T1])
        P.valu("v_add_u32", v(vBq), [hex(9536), T1])
        P.salu(f"s_mul_i32 s{sT+9}, {h}, 96", rd=[h], wr=[f"s{sT+9}"])
        for tt in range(3):
            P.valu("v_add_u32", J, [str(16 * tt), N])
            self.tok_ri_ci(P, J, RI, CI, T1)
            self.tok_off(P, v(vSt + tt), RI, CI, T1, T2)
            P.valu("v_lshl_add_u32", T1, [G, "4", v(vSt + tt)])
            P.valu("v_add_u32", v(vSt + tt), [f"s{sT+9}", T1])
            self.set_flag(P, 2 + tt, [lambda: P.valu("v_cmp_le_u32", "vcc", [thr, CI])], T1)
            P.valu("v_lshrrev_b32", T1, ["2", RI]); P.valu("v_lshrrev_b32", T2, ["2", CI])
            P.valu("v_lshl_add_u32", T3, [T1, "1", T2])
            self.ext_consts(tt, T3, T1, T2, T4, T5)
        P.valu("v_mov_b32", T3, ["3"])
        self.ext_consts(3, T3, T1, T2, T4, T5)
        P.valu("v_lshlrev_b32", T1, ["3", G]); P.valu("v_sub_u32", v(vD2), ["64", T1])
        for i in range(4): P.valu("v_mov_b32", v(vONE + i), ["0x3f803f80"])
        for kt in range(4): P.valu("v_mov_b32", v(vK + 8 * kt + 7), ["0"])
        for b in range(3): P.valu("v_mov_b32", v(vQ + 8 * b + 7), ["0"])
        if o.get("fast"):
            P.valu("v_mov_b32", v(vLmin), ["1.0"]); P.valu("v_mov_b32", v(vLmax), ["1.0"])
        self.bias_table(RP)

    def ext_consts(self, tt, REG, T1, T2, T4, T5):
        P = self.p; G = self.G
        P.valu("v_cmp_eq_u32", "vcc", [REG, G]); P.valu("v_mov_b32", T1, ["0x3f803f80"])
        dst = {0: v(vYq), 1: v(vQ + 8 + 6), 2: v(vYq + 1), 3: v(vQ + 16 + 6)}[tt]
        P.valu("v_cndmask_b32", dst, ["0", T1, "vcc"])
        P.valu("v_xor_b32", T4, [REG, G])
        P.salu(f"s_cmp_eq_u32 s{sWH}, 31", rd=[f"s{sWH}"], wr=["scc"])
        P.salu(f"s_cselect_b32 s{sT+12}, 2, 0", rd=["scc"], wr=[f"s{sT+12}"])
        P.salu(f"s_cmp_eq_u32 s{sWQ}, 7", rd=[f"s{sWQ}"], wr=["scc"])
        P.salu(f"s_cselect_b32 s{sT+13}, 1, 0", rd=["scc"], wr=[f"s{sT+13}"])
        P.salu(f"s_or_b32 s{sT+13}, s{sT+13}, s{sT+12}", rd=[f"s{sT+13}", f"s{sT+12}"], wr=[f"s{sT+13}", "scc"])
        P.valu("v_and_b32", T5, [f"s{sT+12}", T4])
        P.valu("v_cmp_ne_u32", "vcc", ["0", T5]); P.valu("v_mov_b32", T1, [hex(MASKPK)])
        P.valu("v_cndmask_b32", v(vK + 8 * tt + 6), ["0", T1, "vcc"])
        P.valu("v_and_b32", T5, [f"s{sT+13}", T4])
        self.set_flag(P, 5 + tt, [lambda: P.valu("v_cmp_ne_u32", "vcc", ["0", T5])], T1)

    def dma(self, m0txt, m0rd, voff, srd, soff, ioff, tok, exec_half=False, **kw):
        P = self.p
        rd = voff.regs() + S(srd, 4) + ([soff] if soff != "0" else []) + list(m0rd) + ["exec"]
        ld = f"buffer_load_dwordx4 {voff.t()}, s[{srd}:{srd+3}], {soff} offen" + (f" offset:{ioff}" if ioff else "") + " lds"
        b = [m0txt]
        if exec_half: b += [f"s_mov_b64 exec, s[{sHM}:{sHM+1}]", ld, "s_mov_b64 exec, -1"]; rd += S(sHM, 2)
        else: b += ["s_nop 0", ld]
        wr = [tok] if isinstance(tok, str) else list(tok)
        P.add(Op(ld, "dma", rd, wr + ["m0", "scc"], port=4, bundle=b, **kw))

    def x_dma(self, t, **kw):
        buf = t & 1; tok = f"L:xb{buf}"
        tw = t if t < 3 else 0
        for sp in range(3):
            self.dma(f"s_add_u32 m0, s{sMA}, {XB[buf] + 1920*sp}", [f"s{sMA}"], v(vDa), sX, f"s{sWOFF+tw}", 128 * sp, tok, **kw)
        self.dma(f"s_add_u32 m0, s{sMB}, {XB[buf]}", [f"s{sMB}"], v(vDb), sX, f"s{sWOFB+tw}", 0, tok, **kw)
        self.dma(f"s_add_u32 m0, s{sMH}, {XB[buf]}", [f"s{sMH}"], v(vDb), sX, f"s{sWOFF+tw}", 128, tok, exec_half=True, **kw)

    def w_dma(self, k):
        P = self.p
        m, s = self.slots[k]; r = k % NRING
        if m == "o":
            srd = sWo
            if s < 4: regs = self.WA; so = 48 * s * 384
            else: regs = self.WB; so = (96 * (s - 4) + 32) * 384
        else:
            srd = sW; regs = self.WQ; so = s * 32 * 1152 + {"q": 0, "k": 384, "v": 768}[m]
        sreg = f"s{sT + 14 + (k & 1)}"
        P.salu(f"s_mov_b32 {sreg}, {so}", wr=[sreg])
        base = self.o.get("w_t0", 2600); step = self.o.get("w_dt", 77)
        for i in range(3):
            self.dma_n += 1
            self.dma(f"s_add_u32 m0, s{sRING}, {r*3072 + 1024*i}", [f"s{sRING}"], regs[i], srd, sreg, 0, f"L:ring{r}",
                     alat=700, arr=base + step * self.dma_n, bias=4000)

    def w_read(self, k):
        P = self.p
        m, s = self.slots[k]; r = k % NRING
        W = {"k": Wk, "v": Wv, "q": Wq, "o": Wo}[m]
        for j in range(3):
            for hf in range(2):
                if m == "o" and j < 2: ad = self.TR2; off = r * 3072 + hf * 1536 + 8 * j
                elif m == "o": ad = self.TR1; off = r * 3072 + hf * 1536 + 64
                else: ad = self.TR1; off = r * 3072 + hf * 1536 + 32 * j
                P.dsr("ds_read_b64_tr_b16", W(s, j).sub(2 * hf, 2), ad, off, [f"L:ring{r}"], bias=3000)
        if k + NRING < len(self.slots): self.w_dma(k + NRING)

    def bias_table(self, RP):
        P = self.p; L, N, G = self.L, self.N, self.G
        T1, T2, T3 = v(107), v(108), v(109)
        h = f"s{sH}"
        P.salu(f"s_mul_i32 s{sT+9}, {h}, 768", rd=[h], wr=[f"s{sT+9}"])
        P.salu(f"s_add_u32 s{sT+9}, s{sT+9}, {RPB}", rd=[f"s{sT+9}"], wr=[f"s{sT+9}", "scc"])
        rb = f"s{sT+9}"
        P.valu("v_lshlrev_b32", T1, ["2", L]); P.valu("v_add_u32", T1, [rb, T1])
        for i in range(3):
            P.valu("v_lshlrev_b32", RP[i], ["16", RP[i]])
            P.valu("v_mul_f32", RP[i], [f"s{sL2E}", RP[i]])
            P.dsw("ds_write_b32", T1, RP[i], 256 * i, ["L:rpb"])
        VA = [v(125 + i) for i in range(3)]
        RI, CI, J = v(110), v(111), v(112)
        for qt in range(3):
            P.valu("v_add_u32", J, [str(16 * qt), N]); self.tok_ri_ci(P, J, RI, CI, T2)
            P.valu("v_mul_u32_u24", T2, ["13", RI]); P.valu("v_add_u32", T2, [T2, CI])
            P.valu("v_add_u32", T2, ["0x54", T2]); P.valu("v_lshlrev_b32", T2, ["2", T2])
            P.valu("v_add_u32", VA[qt], [rb, T2])
        VBk = [v(136 + i) for i in range(12)]
        for kt in range(3):
            for r in range(4):
                P.valu("v_lshlrev_b32", J, ["2", G]); P.valu("v_add_u32", J, [str(16 * kt + r), J])
                self.tok_ri_ci(P, J, RI, CI, T2)
                P.valu("v_mul_u32_u24", T2, ["13", RI]); P.valu("v_add_u32", T2, [T2, CI])
                P.valu("v_lshlrev_b32", VBk[4 * kt + r], ["2", T2])
        AD = [v(148 + i) for i in range(8)]; DT = [v(160 + 4 * i, 4) for i in range(4)]
        c = 0
        for qt in range(3):
            for kt in range(3):
                d = DT[c % 4]
                for r in range(4):
                    ad = AD[(4 * c + r) % 8]
                    P.valu("v_sub_u32", ad, [VA[qt], VBk[4 * kt + r]])
                    P.dsr("ds_read_b32", d.sub(r), ad, 0, ["L:rpb"])
                P.dsw("ds_write_b128", v(vB), d, (qt * 3 + kt) * 1024, ["L:bias"])
                c += 1
        ER = v(156)
        P.valu("v_lshlrev_b32", ER, ["2", N]); P.valu("v_add_u32", ER, ["s49", ER])
        for qt in range(4):
            d = DT[c % 4].sub(0); ad = AD[c % 8]; c += 1
            if qt < 3: P.valu("v_subrev_u32", ad, [hex(4 * 84), VA[qt]])
            else: P.valu("v_mov_b32", ad, [rb]); P.valu("v_add_u32", ad, [hex(4 * 84), ad])
            P.dsr("ds_read_b32", d, ad, 0, ["L:rpb"])
            P.dsw("ds_write_b32", ER, d, 9216 + 80 * qt, ["L:bias"])
        P.valu("v_mov_b32", T2, [hex(NEG)]); P.valu("v_mov_b32", T3, ["s49"])
        for qt in range(4): P.dsw("ds_write_b32", T3, T2, 9216 + 80 * qt + 64, ["L:bias"])
        for kt in range(3):
            d = DT[c % 4]; c += 1
            for r in range(4):
                ad = AD[(4 * c + r) % 8]
                P.salu(f"s_add_u32 s{sT+10}, {rb}, {4*168}", rd=[rb], wr=[f"s{sT+10}", "scc"])
                P.valu("v_sub_u32", ad, [f"s{sT+10}", VBk[4 * kt + r]])
                P.dsr("ds_read_b32", d.sub(r), ad, 0, ["L:rpb"])
            P.dsw("ds_write_b128", v(vBq), d, 64 * kt, ["L:bias"])

    def xfrag(self, base, tt, s, tok):
        f = v(vXF + 4 * (self.xf_i % 3), 4); self.xf_i += 1
        ad = v(vXe) if s % 2 == 0 else v(vXo)
        self.p.dsr("ds_read_b128", f, ad, base + tt * 6144 + (s >> 1) * 2048, [tok])
        return f
    def cvt(self, dst, lo, hi, **kw): return self.p.valu("v_cvt_pk_bf16_f32", dst, [lo, hi], **kw)

    def e_proj(self):
        P = self.p
        ae, ao = v(vS), v(vS + 1)
        P.valu("v_add_u32", ae, [hex(XE), v(vXe)]); P.valu("v_add_u32", ao, [hex(XE), v(vXo)])
        ka = [v(vKVa + 4 * j, 4) for j in range(3)]; va = [v(vKVa + 12 + 4 * j, 4) for j in range(3)]
        qa = [v(vKVb + 4 * j, 4) for j in range(3)]
        for s in range(6):
            f = v(vXF + 4 * (self.xf_i % 3), 4); self.xf_i += 1
            P.dsr("ds_read_b128", f, ae if s % 2 == 0 else ao, (s >> 1) * 2048, ["L:xe"])
            for j in range(3): P.mfma(ka[j], Wk(s, j), f, ka[j] if s else "0")
            for j in range(3): P.mfma(va[j], f, Wv(s, j), va[j] if s else "0")
            for j in range(3): P.mfma(qa[j], Wq(s, j), f, qa[j] if s else "0")
        self.k_cvt(3, ka); self.v_cvt(3, va); self.q_cvt(v(vQ + 16, 8), qa)
    def k_cvt(self, tt, ka):
        kb = vK + 8 * tt
        for j in range(3):
            for u in range(2): self.cvt(v(kb + 2 * j + u), ka[j].sub(2 * u), ka[j].sub(2 * u + 1))
    def v_cvt(self, tt, va):
        for j in range(3):
            for u in range(2): self.cvt(v(vV + 8 * j + 2 * tt + u), va[j].sub(2 * u), va[j].sub(2 * u + 1))
    def q_cvt(self, q, qa):
        P = self.p
        for j in range(3):
            for r in range(4): P.valu("v_mul_f32", qa[j].sub(r), [f"s{sC}", qa[j].sub(r)])
            for u in range(2): self.cvt(q.sub(2 * j + u), qa[j].sub(2 * u), qa[j].sub(2 * u + 1))

    def kv_proj(self, t, tt):
        P = self.p
        acc = vKVa if tt % 2 == 0 else vKVb
        ka = [v(acc + 4 * j, 4) for j in range(3)]; va = [v(acc + 12 + 4 * j, 4) for j in range(3)]
        for s in range(6):
            f = self.xfrag(XB[t & 1], tt, s, f"L:xb{t&1}")
            for j in range(3): P.mfma(ka[j], Wk(s, j), f, ka[j] if s else "0")
            for j in range(3): P.mfma(va[j], f, Wv(s, j), va[j] if s else "0")
        self.k_cvt(tt, ka); self.v_cvt(tt, va)

    def q_proj(self, t, qt):
        P = self.p
        qa = [v(vKVb + 4 * j, 4) for j in range(3)]
        for s in range(6):
            f = self.xfrag(XB[t & 1], qt, s, f"L:xb{t&1}")
            for j in range(3): P.mfma(qa[j], Wq(s, j), f, qa[j] if s else "0")
        q = v(vQ + 8 * (qt & 1), 8)
        if qt != 1: P.valu("v_mov_b32", q.sub(6), [v(vYq + (qt >> 1))])
        self.q_cvt(q, qa)
        return q

    def attn(self, t, qt, q):
        P = self.p; o = self.o
        sb = vS + 16 * (self.s_i % 2); self.s_i += 1
        Sg = v(sb, 16)
        for kt in range(3):
            if qt < 3: P.dsr("ds_read_b128", Sg.sub(4 * kt, 4), v(vB), (qt * 3 + kt) * 1024, ["L:bias"])
            else: P.dsr("ds_read_b128", Sg.sub(4 * kt, 4), v(vBq), 64 * kt, ["L:bias"])
        P.dsr("ds_read_b32", Sg.sub(12), v(vBE), 9216 + 80 * qt, ["L:bias"])
        for kt in range(4):
            kk = v(vK + 8 * kt, 8); d = Sg.sub(4 * kt, 4)
            P.mfma(d, kk.sub(0, 4), q.sub(0, 4), d, bias=300)
            P.mfma(d, kk.sub(4, 4), q.sub(4, 4), d, bias=300)
        s_ = [Sg.sub(i) for i in range(13)]
        if not o.get("fast"):
            M, T = Sg.sub(13), Sg.sub(14)
            P.valu("v_max3_f32", M, [s_[0], s_[1], s_[2]])
            P.valu("v_max3_f32", T, [s_[3], s_[4], s_[5]])
            P.valu("v_max3_f32", M, [M, s_[6], s_[7]])
            P.valu("v_max3_f32", T, [T, s_[8], s_[9]])
            P.valu("v_max3_f32", M, [M, s_[10], s_[11]])
            P.valu("v_max3_f32", M, [M, T, s_[12]])
            for sw in ("v_permlane32_swap_b32", "v_permlane16_swap_b32"):
                P.valu("v_mov_b32", T, [M])
                P.add(Op(f"{sw} {T.t()}, {M.t()}", "trans", T.regs() + M.regs(), T.regs() + M.regs()))
                P.valu("v_max_f32", M, [M, T])
            for i in range(13): P.valu("v_sub_f32", s_[i], [s_[i], M])
        for i in range(13): P.valu("v_exp_f32", s_[i], [s_[i]], kind="trans")
        for u in range(4): self.cvt(Sg.sub(u), s_[2 * u], s_[2 * u + 1])
        self.cvt(Sg.sub(8), s_[8], s_[9]); self.cvt(Sg.sub(9), s_[10], s_[11])
        self.cvt(Sg.sub(10), s_[12], "0"); P.valu("v_mov_b32", Sg.sub(11), ["0"])
        P0, P1 = Sg.sub(0, 4), Sg.sub(8, 4)
        oa = [v(vOA + 4 * j, 4) for j in range(3)]; sm = v(vOA + 12, 4)
        P.mfma(sm, v(vONE, 4), P0, "0", bias=200); P.mfma(sm, v(vONE, 4), P1, sm, bias=200)
        for j in range(3):
            vv = v(vV + 8 * j, 8)
            P.mfma(oa[j], vv.sub(0, 4), P0, "0", bias=200); P.mfma(oa[j], vv.sub(4, 4), P1, oa[j], bias=200)
        Rc = sm.sub(1)
        P.valu("v_rcp_f32", Rc, [sm.sub(0)], kind="trans")
        if o.get("fast"):
            P.valu("v_min_f32", v(vLmin), [v(vLmin), sm.sub(0)]); P.valu("v_max_f32", v(vLmax), [v(vLmax), sm.sub(0)])
        for j in range(3):
            for r in range(4): P.valu("v_mul_f32", oa[j].sub(r), [oa[j].sub(r), Rc])
        o4 = v(vOA, 4); o2 = v(vOA + 8, 2)
        for u in range(4): self.cvt(o4.sub(u), v(vOA + 2 * u), v(vOA + 2 * u + 1))
        for u in range(2): self.cvt(o2.sub(u), v(vOA + 8 + 2 * u), v(vOA + 9 + 2 * u))
        if qt < 3:
            off = OB[t & 1] - OE + qt * 6144; tok = f"L:ob{t&1}"
            P.dsw("ds_write_b128", v(vOw4), o4, off, [tok]); P.dsw("ds_write_b64", v(vOw2), o2, off, [tok])
        else:
            m = 0x00010001 << (4 * t)
            b = [f"s_mov_b32 exec_lo, {hex(m)}", f"s_mov_b32 exec_hi, {hex(m)}",
                 f"ds_write_b128 {v(vOw4).t()}, {o4.t()}", f"ds_write_b64 {v(vOw2).t()}, {o2.t()}", "s_mov_b64 exec, -1"]
            P.add(Op(b[2], "dsw", V(vOw4) + V(vOw2) + o4.regs() + o2.regs() + ["exec"], ["L:oe"], port=32, bundle=b, alat=(0, 2)))

    def out_proj(self, t, tt):
        P = self.p
        acc = [v(vKVb + 12 + 4 * j, 4) for j in range(3)]
        base = (OB[t & 1] - OE + tt * 6144) if tt < 3 else 0
        tok = f"L:ob{t&1}" if tt < 3 else "L:oe"
        for s in range(6):
            f = v(vOF + 4 * (self.of_i % 3), 4); self.of_i += 1
            P.dsr("ds_read_b128", f, v(vOr), base + s * 1024, [tok])
            for j in range(3): P.mfma(acc[j], Wo(s, j), f, acc[j] if s else "0")
        b0 = vKVb + 12
        o4 = v(b0, 4); o2 = v(b0 + 8, 2); t2 = v(b0 + 10)
        for u in range(4): self.cvt(o4.sub(u), v(b0 + 2 * u), v(b0 + 2 * u + 1))
        for u in range(2): self.cvt(o2.sub(u), v(b0 + 8 + 2 * u), v(b0 + 9 + 2 * u))
        if tt < 3: so = v(vSt + tt); soff = f"s{sWOFF+t}" if t in (1, 2) else "0"
        else: so = self.e_store_off(); soff = "0"
        P.valu("v_add_u32", t2, [so, v(vD2)])
        fl = self.o.get("stflags", "")
        rdS = S(sO, 4) + ([soff] if soff != "0" else []) + ["exec"]
        P.add(Op(f"buffer_store_dwordx4 {o4.t()}, {so.t()}, s[{sO}:{sO+3}], {soff} offen {fl}".rstrip(), "vst", o4.regs() + so.regs() + rdS, [], port=20))
        P.add(Op(f"buffer_store_dwordx2 {o2.t()}, {t2.t()}, s[{sO}:{sO+3}], {soff} offen {fl}".rstrip(), "vst", o2.regs() + t2.regs() + rdS, [], port=12))

    def e_store_off(self):
        P = self.p
        D, T1, T2, Lr = v(vS), v(vS + 1), v(vS + 2), v(vS + 3)
        P.valu("v_lshrrev_b32", Lr, ["4", v(vOr)])
        P.valu("v_subrev_u32", Lr, [hex(OE >> 4), Lr])
        P.valu("v_bfe_u32", T1, [Lr, "2", "2"])
        P.valu("v_mul_u32_u24", D, ["7", T1]); P.valu("v_add_u32", D, [f"s{sT+1}", D]); P.valu("v_add_u32", D, ["6", D])
        P.valu("v_subrev_u32", T2, ["224", D]); P.valu("v_min_u32", D, [D, T2]); P.valu("v_mul_u32_u24", D, ["384", D])
        P.salu(f"s_add_u32 s{sT+10}, s{sT}, 6", rd=[f"s{sT}"], wr=[f"s{sT+10}", "scc"])
        P.salu(f"s_cmp_ge_u32 s{sT+10}, 224", rd=[f"s{sT+10}"], wr=["scc"])
        P.salu(f"s_cselect_b32 s{sT+11}, 224, 0", rd=["scc"], wr=[f"s{sT+11}"])
        P.salu(f"s_sub_u32 s{sT+10}, s{sT+10}, s{sT+11}", rd=[f"s{sT+10}", f"s{sT+11}"], wr=[f"s{sT+10}", "scc"])
        P.salu(f"s_mul_i32 s{sT+10}, s{sT+10}, {ROWB}", rd=[f"s{sT+10}"], wr=[f"s{sT+10}"])
        P.salu(f"s_mul_i32 s{sT+11}, s{sH}, 96", rd=[f"s{sH}"], wr=[f"s{sT+11}"])
        P.salu(f"s_add_u32 s{sT+10}, s{sT+10}, s{sT+11}", rd=[f"s{sT+10}", f"s{sT+11}"], wr=[f"s{sT+10}", "scc"])
        P.valu("v_add_u32", D, [f"s{sT+10}", D])
        P.valu("v_lshrrev_b32", T1, ["4", Lr]); P.valu("v_lshl_add_u32", D, [T1, "4", D])
        P.valu("v_and_b32", T1, ["3", Lr]); P.valu("v_cmp_eq_u32", "vcc", ["0", T1])
        P.valu("v_mov_b32", T2, [hex(OOB)]); P.valu("v_cndmask_b32", D, [T2, D, "vcc"])
        return D

    def set_vBE(self, t):
        P = self.p
        T = v(vSpare)
        P.valu("v_lshrrev_b32", T, ["4", v(vOr)]); P.valu("v_subrev_u32", T, [hex(OE >> 4), T])
        P.valu("v_lshrrev_b32", v(vBE), ["4", T]); P.valu("v_cmp_eq_u32", "vcc", [str(t), v(vBE)])
        P.valu("v_and_b32", T, ["15", T]); P.valu("v_mov_b32", v(vBE), ["16"])
        P.valu("v_cndmask_b32", T, [v(vBE), T, "vcc"])
        P.valu("v_lshlrev_b32", T, ["2", T]); P.valu("v_add_u32", v(vBE), ["s49", T])

    def wrap_fix(self, regs):
        P = self.p; T = v(vSpare)
        for reg, bit in regs:
            P.valu("v_bfe_i32", T, [v(vWrap), str(bit), "1"]); P.valu("v_and_b32", T, [hex(ROWB), T])
            P.valu("v_sub_u32", reg, [reg, T]); P.valu("v_add_u32", reg, [hex(3 * 2688), reg])
    def kext_fix(self):
        P = self.p; T = v(vSpare)
        for kt in range(4):
            P.valu("v_bfe_i32", T, [v(vWrap), str(5 + kt), "1"])
            P.valu("v_and_b32", v(vK + 8 * kt + 6), [hex(MASKPK), T])

    def barrier(self, pub_w=(), pub_r=(), note=""):
        toks = list(pub_w) + list(pub_r)
        self.p.add(Op("s_barrier", "bar", toks, toks, pub_w=tuple(pub_w), pub_r=tuple(pub_r), note=note))

    def dump(self, regs, label=""):
        P = self.p
        for r in regs:
            cls = r[0]; i = int(r[1:])
            T = v(vSpare)
            if cls == "a": P.add(Op(f"v_accvgpr_read_b32 v{vSpare}, a{i}", "valu", [r], [f"v{vSpare}"])); src = T
            else: src = v(i)
            self.p.salu(f"s_mov_b32 s84, {self.dbg_n*256}", wr=["s84"])
            P.add(Op(f"buffer_store_dword {src.t()}, v{DBGA}, s[80:83], s84 offen", "vst", src.regs() + [f"v{DBGA}", "s84"] + S(80, 4) + ["exec"], [], port=8))
            print(f"; dump slot {self.dbg_n}: {label} {r}", file=sys.stderr)
            self.dbg_n += 1

    def main(self):
        P = self.p; o = self.o
        self.s_i = 0
        nsl = len(self.slots)
        wread = iter(range(nsl))
        for k in range(nsl): self.w_read(k)
        self.barrier(pub_w=["L:xe", "L:xb0"], note="b0")
        self.set_vBE(0)
        self.e_proj()
        for t in range(4):
            if t: self.set_vBE(t)
            if t == 3: self.kext_fix()
            for tt in range(3): self.kv_proj(t, tt)
            for qt in range(4):
                q = self.q_proj(t, qt) if qt < 3 else v(vQ + 16, 8)
                if qt == 2:
                    pw = [f"L:xb{(t+1)&1}"] if t < 3 else []
                    pr = [f"L:xb{t&1}"] + (["L:xe"] if t == 0 else [])
                    if t < 3:
                        self.barrier(pub_w=pw, pub_r=pr, note=f"mid{t}")
                        if t + 2 < 4:
                            if t + 2 == 3: self.wrap_fix([(v(vDa), 0), (v(vDb), 1)])
                            self.x_dma(t + 2, alat=1500)
                self.attn(t, qt, q)
                if t > 0 and qt < 3:
                    if t - 1 == 0 or True: pass
                    self.out_proj(t - 1, qt)
            pr = [f"L:ob{(t+1)&1}"] + ([f"L:ring{r}" for r in range(NRING)] if t == 0 else [])
            self.barrier(pub_w=[f"L:ob{t&1}", "L:oe"], pub_r=pr, note=f"end{t}")
        self.wrap_fix([(v(vSt + tt), 2 + tt) for tt in range(3)])
        for tt in range(3): self.out_proj(3, tt)
        self.out_proj(3, 3)

DBGA = 18

def build(opts):
    k = K(opts)
    k.entry(); k.setup(); k.main()
    em = Emitter()
    for i, op in enumerate(k.pre.ops): op.idx = i
    linear(k.pre.ops, em)
    em.pos = {}
    pre_n = len(em.out)
    if opts.get("sched", 1):
        em, end, times = schedule(k.p.ops, em, verbose=True, lds_lat=opts.get("lds_lat", L_DS))
    else:
        linear(k.p.ops, em)
    lines = []
    for txt, op in em.out: lines.append(txt if txt.endswith(":") else "    " + txt)
    body = "\n".join(lines)
    name = "standalone__window_attn_swin__vision_kernel"
    hdr = open("standalone__window_attn_swin__vision.s.ref").read().split("; Override launch")[0]
    txt = hdr + f"""; Override launch geometry by editing the next line (default: block=256,
; grid=ceil(out_elems/256), lds=0). Harness parses it; keep it on one line.
; @launch grid=(256,1,1) block=(256,1,1) lds={LDS_TOTAL}
.amdgcn_target "amdgcn-amd-amdhsa--gfx950"
.text
.globl {name}
.p2align 8
.type {name},@function
{name}:
    s_cmp_ge_u32 s2, 256
    s_cbranch_scc0 L_work
    s_endpgm
L_work:
{body}
    s_endpgm
L_codeend:
.section .rodata,"a"
.p2align 6
.amdhsa_kernel {name}
  .amdhsa_next_free_vgpr 512
  .amdhsa_next_free_sgpr 96
  .amdhsa_accum_offset 256
  .amdhsa_group_segment_fixed_size 0
  .amdhsa_kernarg_size 72
  .amdhsa_user_sgpr_count 2
  .amdhsa_user_sgpr_kernarg_segment_ptr 1
  .amdhsa_system_sgpr_workgroup_id_x 1
  .amdhsa_float_denorm_mode_32 3
.end_amdhsa_kernel
"""
    return txt

if __name__ == "__main__":
    import argparse
    ap = argparse.ArgumentParser()
    ap.add_argument("-o", default="out.s")
    ap.add_argument("opts", nargs="*")
    a_ = ap.parse_args()
    opts = {}
    for x in a_.opts:
        kk, vv = x.split("=")
        try: vv = int(vv)
        except ValueError: pass
        opts[kk] = vv
    open(a_.o, "w").write(build(opts))
```

```python
import sys, math, struct
from ir import *

def f32(x): return struct.unpack("<I", struct.pack("<f", x))[0]
def bf16_rne(x):
    u = f32(x); return ((u + 0x7fff + ((u >> 16) & 1)) >> 16) & 0xffff
def bf16_val(h): return struct.unpack("<f", struct.pack("<I", h << 16))[0]
LOG2E = 1.4426950408889634
CSC = (48 ** -0.5) * LOG2E
MASK = -100.0 * LOG2E
MHI = bf16_rne(MASK); MLO = bf16_rne(MASK - bf16_val(MHI))
MASKPK = MHI | (MLO << 16)
NEG = f32(-1.0e30)
ROWB = 224 * 384
OOB = 0x40000000

XB = [0, 18432]
BIAS = 36864; BIAS_H = 9728
RPB = BIAS + 4 * BIAS_H
OE = RPB + 3072
OB = [OE + 6144, OE + 6144 + 18432]
XE = OB[1]
RING = OB[1] + 6144
NRING = 4
LDS_TOTAL = RING + 4 * NRING * 3072
assert LDS_TOTAL <= 163840

sX, sW, sWo, sR, sO = 20, 24, 28, 32, 36
sH, sWH, sWQ, sC, sL2E = 40, 41, 42, 43, 44
sMA, sMB, sMH, sRING = 45, 46, 47, 48
sHM = 50
sWOFF = 52
sWOFB = 56
sT = 60

vXe, vXo, vOr, vOw4, vOw2, vB, vBq, vBE = range(0, 8)
vDa, vDb, vD2, vWrap = 8, 9, 10, 11
vSt = 12
vYq = 15
vLmin, vLmax = 17, 18
vSpare = 19
vONE = 20
vK = 24
vQ = 56
vV = 80
vS = 104
vKVa = 136
vKVb = 160
vOA = 184
vXF = 200
vOF = 212
vWoV = 224

def Wk(s, j): return a(0 + (s * 3 + j) * 4, 4)
def Wv(s, j): return a(72 + (s * 3 + j) * 4, 4)
def Wq(s, j): return a(144 + (s * 3 + j) * 4, 4)
def Wo(s, j):
    f = s * 3 + j
    return a(216 + 4 * f, 4) if f < 10 else v(vWoV + 4 * (f - 10), 4)

class K:
    def __init__(self, opts):
        self.o = opts
        self.pre = Prog(); self.p = Prog()
        self.xf_i = 0; self.of_i = 0
        self.dbg_n = 0
        self.stamp_s = 80

    def tok_ri_ci(self, P, j, ri, ci, tmp):
        P.valu("v_mul_u32_u24", ri, ["37", j]); P.valu("v_lshrrev_b32", ri, ["8", ri])
        P.valu("v_mul_u32_u24", tmp, ["7", ri]); P.valu("v_sub_u32", ci, [j, tmp])
    def tok_off(self, P, dst, ri, ci, t1, t2):
        P.valu("v_add_u32", t1, [f"s{sT}", ri])
        P.valu("v_subrev_u32", t2, ["224", t1])
        P.valu("v_min_u32", t1, [t1, t2])
        P.valu("v_mul_u32_u24", dst, [f"s{sT+2}", t1])
        P.valu("v_add_u32", t1, [f"s{sT+1}", ci])
        P.valu("v_mul_u32_u24", t1, ["384", t1])
        P.valu("v_add_u32", dst, [dst, t1])
    def set_flag(self, P, bit, cond_vcc_ops, tmp):
        for f in cond_vcc_ops: f()
        P.valu("v_mov_b32", tmp, [str(1 << bit) if bit <= 6 else hex(1 << bit)])
        P.valu("v_cndmask_b32", tmp, ["0", tmp, "vcc"])
        P.valu("v_or_b32", v(vWrap), [v(vWrap), tmp])

    def entry(self):
        P = self.pre; o = self.o
        P.salu("s_load_dwordx8 s[8:15], s[0:1], 0", wr=S(8, 8))
        P.salu("s_load_dwordx2 s[16:17], s[0:1], 48", wr=S(16, 2))
        if o.get("dump"): P.salu("s_load_dwordx2 s[18:19], s[0:1], 64", wr=S(18, 2))
        if o.get("codepf", 1):
            P.add(Op("s_getpc_b64 s[70:71]", "salu", [], S(70, 2), bundle=["s_getpc_b64 s[70:71]", "L_pc:"]))
            P.valu("v_lshlrev_b32", v(200), ["7", v(0)])
            P.valu("v_min_u32", v(202), ["L_codeend-L_pc-4", v(200)])
            P.add(Op("global_load_dword v201, v202, s[70:71]", "vld", V(202) + S(70, 2), V(201)))
            P.valu("v_add_u32", v(200), ["0x8000", v(200)])
            P.valu("v_min_u32", v(202), ["L_codeend-L_pc-4", v(200)])
            P.add(Op("global_load_dword v203, v202, s[70:71]", "vld", V(202) + S(70, 2), V(203)))
        L, N, G, T1, T2, T3, RI, CI = [v(i) for i in range(104, 112)]
        self.L, self.N, self.G = L, N, G
        P.valu("v_lshrrev_b32", T1, ["6", v(0)])
        P.valu("v_and_b32", L, ["63", v(0)])
        P.valu("v_readfirstlane_b32", f"s{sH}", [T1])
        P.valu("v_and_b32", N, ["15", L]); P.valu("v_lshrrev_b32", G, ["4", L])
        P.salu(f"s_lshr_b32 s{sWH}, s2, 3", rd=["s2"], wr=[f"s{sWH}", "scc"])
        P.salu(f"s_and_b32 s{sWQ}, s2, 7", rd=["s2"], wr=[f"s{sWQ}", "scc"])
        P.salu(f"s_mul_i32 s{sT}, s{sWH}, 7", rd=[f"s{sWH}"], wr=[f"s{sT}"])
        P.salu(f"s_add_u32 s{sT}, s{sT}, 3", rd=[f"s{sT}"], wr=[f"s{sT}", "scc"])
        P.salu(f"s_mul_i32 s{sT+1}, s{sWQ}, 28", rd=[f"s{sWQ}"], wr=[f"s{sT+1}"])
        P.salu(f"s_add_u32 s{sT+1}, s{sT+1}, 3", rd=[f"s{sT+1}"], wr=[f"s{sT+1}", "scc"])
        P.salu(f"s_mov_b32 s{sT+2}, {ROWB}", wr=[f"s{sT+2}"])
        P.salu(f"s_mov_b32 s{sC}, {hex(f32(CSC))}", wr=[f"s{sC}"])
        P.salu(f"s_mov_b32 s{sL2E}, {hex(f32(LOG2E))}", wr=[f"s{sL2E}"])
        for t in range(4): P.salu(f"s_mov_b32 s{sWOFF+t}, {2688*t}", wr=[f"s{sWOFF+t}"])
        h = f"s{sH}"
        P.salu(f"s_and_b32 s{sT+3}, {h}, 1", rd=[h], wr=[f"s{sT+3}", "scc"])
        P.salu(f"s_lshr_b32 s{sT+4}, {h}, 1", rd=[h], wr=[f"s{sT+4}", "scc"])
        P.salu(f"s_mul_i32 s{sMA}, s{sT+4}, 6144", rd=[f"s{sT+4}"], wr=[f"s{sMA}"])
        P.salu(f"s_lshl_b32 s{sT+5}, s{sT+3}, 10", rd=[f"s{sT+3}"], wr=[f"s{sT+5}", "scc"])
        P.salu(f"s_add_u32 s{sMA}, s{sMA}, s{sT+5}", rd=[f"s{sMA}", f"s{sT+5}"], wr=[f"s{sMA}", "scc"])
        P.salu(f"s_lshl_b32 s{sT+5}, s{sT+4}, 10", rd=[f"s{sT+4}"], wr=[f"s{sT+5}", "scc"])
        P.salu(f"s_add_u32 s{sMH}, s{sT+5}, {12288 + 2048 - 128}", rd=[f"s{sT+5}"], wr=[f"s{sMH}", "scc"])
        P.salu(f"s_lshl_b32 s{sT+6}, s{sT+3}, 12", rd=[f"s{sT+3}"], wr=[f"s{sT+6}", "scc"])
        P.salu(f"s_add_u32 s{sMB}, s{sT+5}, s{sT+6}", rd=[f"s{sT+5}", f"s{sT+6}"], wr=[f"s{sMB}", "scc"])
        P.salu(f"s_add_u32 s{sMB}, s{sMB}, 12288", rd=[f"s{sMB}"], wr=[f"s{sMB}", "scc"])
        P.salu(f"s_lshl_b32 s{sT+6}, s{sT+3}, 8", rd=[f"s{sT+3}"], wr=[f"s{sT+6}", "scc"])
        for t in range(4):
            P.salu(f"s_add_u32 s{sWOFB+t}, s{sT+6}, {2688*t}", rd=[f"s{sT+6}"], wr=[f"s{sWOFB+t}", "scc"])
        P.salu(f"s_sub_u32 s{sHM+1}, 0, s{sT+3}", rd=[f"s{sT+3}"], wr=[f"s{sHM+1}", "scc"])
        P.salu(f"s_not_b32 s{sHM}, s{sHM+1}", rd=[f"s{sHM+1}"], wr=[f"s{sHM}", "scc"])
        P.salu(f"s_mul_i32 s{sRING}, {h}, {NRING*3072}", rd=[h], wr=[f"s{sRING}"])
        P.salu(f"s_add_u32 s{sRING}, s{sRING}, {RING}", rd=[f"s{sRING}"], wr=[f"s{sRING}", "scc"])
        P.salu("s_waitcnt lgkmcnt(0)", rd=S(8, 8) + S(16, 2), wr=S(8, 8) + S(16, 4))
        def srd(d, p, n):
            P.salu(f"s_mov_b32 s{d}, s{p}", rd=[f"s{p}"], wr=[f"s{d}"])
            P.salu(f"s_and_b32 s{d+1}, s{p+1}, 0xffff", rd=[f"s{p+1}"], wr=[f"s{d+1}", "scc"])
            P.salu(f"s_mov_b32 s{d+2}, {n}", wr=[f"s{d+2}"])
            P.salu(f"s_mov_b32 s{d+3}, 0x20000", wr=[f"s{d+3}"])
        srd(sR, 14, 1352); srd(sW, 10, 221184); srd(sWo, 12, 73728); srd(sX, 8, 19267584); srd(sO, 16, 19267584)
        if o.get("dump"): srd(80, 18, 1 << 28)

    def setup(self):
        P = self.p; o = self.o
        L, N, G = self.L, self.N, self.G
        T1, T2, T3, RI, CI, J, T4, T5 = [v(i) for i in (107, 108, 109, 110, 111, 112, 113, 114)]
        h = f"s{sH}"
        RP = [v(116), v(117), v(118)]
        P.valu("v_lshlrev_b32", T1, ["3", L])
        P.salu(f"s_lshl_b32 s{sT+7}, {h}, 1", rd=[h], wr=[f"s{sT+7}", "scc"])
        for i in range(3):
            P.add(Op(f"buffer_load_ushort {RP[i].t()}, {T1.t()}, s[{sR}:{sR+3}], s{sT+7} offen offset:{512*i}", "vld",
                     T1.regs() + S(sR, 4) + [f"s{sT+7}", "exec"], RP[i].regs(), alat=2200, bias=5000))
        if o.get("touch", 1):
            P.valu("v_lshlrev_b32", T2, ["5", v(0)])
            P.valu("v_add_u32", T2, [f"s{sWH}", T2])
            P.valu("v_lshlrev_b32", T2, ["7", T2])
            P.add(Op(f"buffer_load_dword v119, {T2.t()}, s[{sW}:{sW+3}], 0 offen", "vld", T2.regs() + S(sW, 4) + ["exec"], V(119), bias=6000))
            P.add(Op(f"buffer_load_dword v120, {T2.t()}, s[{sWo}:{sWo+3}], 0 offen", "vld", T2.regs() + S(sWo, 4) + ["exec"], V(120), bias=6000))
        if o.get("dump"):
            P.salu("s_lshl_b32 s85, s2, 2", rd=["s2"], wr=["s85", "scc"])
            P.salu(f"s_add_u32 s85, s85, {h}", rd=["s85", h], wr=["s85", "scc"])
            P.salu("s_lshl_b32 s85, s85, 16", rd=["s85"], wr=["s85", "scc"])
            P.valu("v_lshlrev_b32", v(DBGA), ["2", L]); P.valu("v_add_u32", v(DBGA), ["s85", v(DBGA)])
        P.valu("v_mov_b32", v(vWrap), ["0"])
        P.salu(f"s_cmp_eq_u32 s{sWQ}, 7", rd=[f"s{sWQ}"], wr=["scc"])
        P.salu(f"s_cselect_b32 s{sT+8}, 4, 64", rd=["scc"], wr=[f"s{sT+8}"])
        thr = f"s{sT+8}"
        LH, LL = v(121), v(122)
        P.valu("v_lshrrev_b32", LH, ["3", L]); P.valu("v_and_b32", LL, ["7", L])
        def dma_off(dst, tt_expr, hf_s, bit):
            NN = T4
            P.salu(f"s_lshl_b32 s{sT+9}, {hf_s}, 3", rd=[hf_s], wr=[f"s{sT+9}", "scc"])
            P.valu("v_add_u32", NN, [f"s{sT+9}", LH])
            tt_expr(J, NN)
            self.tok_ri_ci(P, J, RI, CI, T1)
            self.tok_off(P, dst, RI, CI, T1, T2)
            P.valu("v_bfe_u32", T1, [NN, "1", "3"])
            P.valu("v_xor_b32", T1, [T1, LL])
            P.valu("v_lshl_add_u32", dst, [T1, "4", dst])
            self.set_flag(P, bit, [lambda: P.valu("v_cmp_le_u32", "vcc", [thr, CI])], T1)
        def ttA(J_, NN):
            P.salu(f"s_lshl_b32 s{sT+9}, s{sT+4}, 4", rd=[f"s{sT+4}"], wr=[f"s{sT+9}", "scc"])
            P.valu("v_add_u32", J_, [f"s{sT+9}", NN])
        def ttB(J_, NN): P.valu("v_add_u32", J_, ["32", NN])
        dma_off(v(vDa), ttA, f"s{sT+3}", 0)
        dma_off(v(vDb), ttB, f"s{sT+4}", 1)
        XEo = [v(123), v(124)]
        P.salu(f"s_min_u32 s{sT+9}, {h}, 2", rd=[h], wr=[f"s{sT+9}", "scc"])
        P.salu(f"s_add_u32 s{sT+10}, s{sT}, 6", rd=[f"s{sT}"], wr=[f"s{sT+10}", "scc"])
        P.salu(f"s_cmp_ge_u32 s{sT+10}, 224", rd=[f"s{sT+10}"], wr=["scc"])
        P.salu(f"s_cselect_b32 s{sT+11}, 224, 0", rd=["scc"], wr=[f"s{sT+11}"])
        P.salu(f"s_sub_u32 s{sT+10}, s{sT+10}, s{sT+11}", rd=[f"s{sT+10}", f"s{sT+11}"], wr=[f"s{sT+10}", "scc"])
        P.salu(f"s_mul_i32 s{sT+10}, s{sT+10}, {ROWB}", rd=[f"s{sT+10}"], wr=[f"s{sT+10}"])
        P.salu(f"s_lshl_b32 s{sT+11}, s{sT+9}, 7", rd=[f"s{sT+9}"], wr=[f"s{sT+11}", "scc"])
        P.salu(f"s_add_u32 s{sT+11}, s{sT+11}, s{sT+10}", rd=[f"s{sT+11}", f"s{sT+10}"], wr=[f"s{sT+11}", "scc"])
        def ecol(dst, w_reg):
            P.valu("v_mul_u32_u24", dst, ["7", w_reg])
            P.valu("v_add_u32", dst, [f"s{sT+1}", dst]); P.valu("v_add_u32", dst, ["6", dst])
            P.valu("v_subrev_u32", T3, ["224", dst]); P.valu("v_min_u32", dst, [dst, T3])
            P.valu("v_mul_u32_u24", dst, ["384", dst])
        for hf in range(2):
            NN = T4
            P.valu("v_add_u32", NN, [str(8 * hf), LH])
            P.valu("v_lshrrev_b32", T1, ["2", NN])
            ecol(T2, T1)
            P.valu("v_add_u32", T2, [f"s{sT+11}", T2])
            P.valu("v_bfe_u32", T1, [NN, "1", "3"]); P.valu("v_xor_b32", T1, [T1, LL])
            P.valu("v_lshl_add_u32", T2, [T1, "4", T2])
            P.valu("v_and_b32", T1, ["3", NN])
            P.valu("v_cmp_eq_u32", "vcc", ["0", T1])
            P.valu("v_mov_b32", T1, [hex(OOB)])
            P.valu("v_cndmask_b32", XEo[hf], [T1, T2, "vcc"])
        P.salu(f"s_lshl_b32 s{sT+9}, s{sT+9}, 11", rd=[f"s{sT+9}"], wr=[f"s{sT+9}", "scc"])
        for hf in range(2):
            self.dma(f"s_add_u32 m0, s{sT+9}, {XE + 1024*hf}", [f"s{sT+9}"], XEo[hf], sX, "0", 0, "L:xe", alat=2400, bias=7000)
        self.x_dma(0, alat=2400, bias=7000)
        WQ = [v(vOF + i) for i in range(3)]; WA = [v(vOF + 3 + i) for i in range(3)]; WB = [v(vOF + 6 + i) for i in range(3)]
        self.WQ, self.WA, self.WB = WQ, WA, WB
        P.salu(f"s_mul_i32 s{sT+9}, {h}, 96", rd=[h], wr=[f"s{sT+9}"])
        P.salu(f"s_mov_b32 s{sT+10}, 0x2AAAAAAB", wr=[f"s{sT+10}"])
        for i in range(3):
            Q_, Pp, U = T1, T2, T3
            P.valu("v_add_u32", Q_, [str(64 * i) if 64 * i <= 64 else hex(64 * i), L])
            P.valu("v_mul_hi_u32", Pp, [Q_, f"s{sT+10}"])
            P.valu("v_mul_u32_u24", U, ["6", Pp]); P.valu("v_sub_u32", U, [Q_, U])
            P.valu("v_lshlrev_b32", U, ["4", U]); P.valu("v_add_u32", U, [f"s{sT+9}", U])
            P.valu("v_bfe_u32", T4, [Pp, "2", "2"]); P.valu("v_lshlrev_b32", T4, ["3", T4])
            P.valu("v_lshrrev_b32", T5, ["4", Pp]); P.valu("v_lshl_add_u32", T4, [T5, "2", T4])
            P.valu("v_and_b32", Q_, ["3", Pp]); P.valu("v_add_u32", T4, [T4, Q_])
            P.valu("v_mul_u32_u24", T4, ["0x480", T4]); P.valu("v_add_u32", WQ[i], [T4, U])
            P.valu("v_mul_u32_u24", T4, ["0x180", Pp]); P.valu("v_add_u32", WA[i], [T4, U])
            P.valu("v_mul_u32_u24", T5, ["0x3000", T5])
            P.valu("v_add_u32", WB[i], [WA[i], T5])
        TR1, TR2 = v(vOF + 9), v(vOF + 10)
        self.TR1, self.TR2 = TR1, TR2
        P.valu("v_bfe_u32", T1, [L, "2", "2"])
        P.valu("v_lshl_add_u32", T1, [G, "2", T1])
        P.valu("v_mul_u32_u24", T1, ["0x60", T1])
        P.valu("v_add_u32", T1, [f"s{sRING}", T1])
        P.valu("v_and_b32", T2, ["3", L])
        P.valu("v_lshl_add_u32", TR1, [T2, "3", T1]); P.valu("v_lshl_add_u32", TR2, [T2, "4", T1])
        self.slots = []
        order = o.get("worder", "kvqo")
        for m in order:
            for s in range(6): self.slots.append((m, s))
        self.dma_n = 0
        for k in range(NRING): self.w_dma(k)
        self.x_dma(1, alat=3000, bias=0)
        P.valu("v_bfe_u32", T1, [N, "1", "3"]); P.valu("v_xor_b32", T1, [T1, G])
        P.valu("v_lshlrev_b32", T1, ["4", T1]); P.valu("v_lshl_add_u32", v(vXe), [N, "7", T1])
        P.valu("v_xor_b32", v(vXo), ["64", v(vXe)])
        P.valu("v_lshlrev_b32", T5, ["4", L])
        P.valu("v_add_u32", v(vOr), [hex(OE), T5])
        P.salu(f"s_lshl_b32 s{sT+9}, {h}, 10", rd=[h], wr=[f"s{sT+9}", "scc"])
        P.valu("v_add_u32", v(vOw4), [f"s{sT+9}", v(vOr)])
        P.salu(f"s_lshl_b32 s{sT+9}, s{sT+4}, 10", rd=[f"s{sT+4}"], wr=[f"s{sT+9}", "scc"])
        P.salu(f"s_lshl_b32 s{sT+10}, s{sT+3}, 3", rd=[f"s{sT+3}"], wr=[f"s{sT+10}", "scc"])
        P.salu(f"s_add_u32 s{sT+9}, s{sT+9}, s{sT+10}", rd=[f"s{sT+9}", f"s{sT+10}"], wr=[f"s{sT+9}", "scc"])
        P.salu(f"s_add_u32 s{sT+9}, s{sT+9}, 4096", rd=[f"s{sT+9}"], wr=[f"s{sT+9}", "scc"])
        P.valu("v_add_u32", v(vOw2), [f"s{sT+9}", v(vOr)])
        P.salu(f"s_mul_i32 s{sT+9}, {h}, {BIAS_H}", rd=[h], wr=[f"s{sT+9}"])
        P.salu(f"s_add_u32 s{sT+9}, s{sT+9}, {BIAS}", rd=[f"s{sT+9}"], wr=[f"s{sT+9}", "scc"])
        P.salu(f"s_mov_b32 s49, s{sT+9}", rd=[f"s{sT+9}"], wr=["s49"])
        P.valu("v_add_u32", v(vB), ["s49", T5])
        P.valu("v_lshlrev_b32", T1, ["4", G]); P.valu("v_add_u32", T1, ["s49", T1])
        P.valu("v_add_u32", v(vBq), [hex(9536), T1])
        P.salu(f"s_mul_i32 s{sT+9}, {h}, 96", rd=[h], wr=[f"s{sT+9}"])
        for tt in range(3):
            P.valu("v_add_u32", J, [str(16 * tt), N])
            self.tok_ri_ci(P, J, RI, CI, T1)
            self.tok_off(P, v(vSt + tt), RI, CI, T1, T2)
            P.valu("v_lshl_add_u32", T1, [G, "4", v(vSt + tt)])
            P.valu("v_add_u32", v(vSt + tt), [f"s{sT+9}", T1])
            self.set_flag(P, 2 + tt, [lambda: P.valu("v_cmp_le_u32", "vcc", [thr, CI])], T1)
            P.valu("v_lshrrev_b32", T1, ["2", RI]); P.valu("v_lshrrev_b32", T2, ["2", CI])
            P.valu("v_lshl_add_u32", T3, [T1, "1", T2])
            self.ext_consts(tt, T3, T1, T2, T4, T5)
        P.valu("v_mov_b32", T3, ["3"])
        self.ext_consts(3, T3, T1, T2, T4, T5)
        P.valu("v_lshlrev_b32", T1, ["3", G]); P.valu("v_sub_u32", v(vD2), ["64", T1])
        for i in range(4): P.valu("v_mov_b32", v(vONE + i), ["0x3f803f80"])
        for kt in range(4): P.valu("v_mov_b32", v(vK + 8 * kt + 7), ["0"])
        for b in range(3): P.valu("v_mov_b32", v(vQ + 8 * b + 7), ["0"])
        if o.get("fast"):
            P.valu("v_mov_b32", v(vLmin), ["1.0"]); P.valu("v_mov_b32", v(vLmax), ["1.0"])
        self.bias_table(RP)

    def ext_consts(self, tt, REG, T1, T2, T4, T5):
        P = self.p; G = self.G
        P.valu("v_cmp_eq_u32", "vcc", [REG, G]); P.valu("v_mov_b32", T1, ["0x3f803f80"])
        dst = {0: v(vYq), 1: v(vQ + 8 + 6), 2: v(vYq + 1), 3: v(vQ + 16 + 6)}[tt]
        P.valu("v_cndmask_b32", dst, ["0", T1, "vcc"])
        P.valu("v_xor_b32", T4, [REG, G])
        P.salu(f"s_cmp_eq_u32 s{sWH}, 31", rd=[f"s{sWH}"], wr=["scc"])
        P.salu(f"s_cselect_b32 s{sT+12}, 2, 0", rd=["scc"], wr=[f"s{sT+12}"])
        P.salu(f"s_cmp_eq_u32 s{sWQ}, 7", rd=[f"s{sWQ}"], wr=["scc"])
        P.salu(f"s_cselect_b32 s{sT+13}, 1, 0", rd=["scc"], wr=[f"s{sT+13}"])
        P.salu(f"s_or_b32 s{sT+13}, s{sT+13}, s{sT+12}", rd=[f"s{sT+13}", f"s{sT+12}"], wr=[f"s{sT+13}", "scc"])
        P.valu("v_and_b32", T5, [f"s{sT+12}", T4])
        P.valu("v_cmp_ne_u32", "vcc", ["0", T5]); P.valu("v_mov_b32", T1, [hex(MASKPK)])
        P.valu("v_cndmask_b32", v(vK + 8 * tt + 6), ["0", T1, "vcc"])
        P.valu("v_and_b32", T5, [f"s{sT+13}", T4])
        self.set_flag(P, 5 + tt, [lambda: P.valu("v_cmp_ne_u32", "vcc", ["0", T5])], T1)

    def dma(self, m0txt, m0rd, voff, srd, soff, ioff, tok, exec_half=False, **kw):
        P = self.p
        rd = voff.regs() + S(srd, 4) + ([soff] if soff != "0" else []) + list(m0rd) + ["exec"]
        ld = f"buffer_load_dwordx4 {voff.t()}, s[{srd}:{srd+3}], {soff} offen" + (f" offset:{ioff}" if ioff else "") + " lds"
        b = [m0txt]
        if exec_half: b += [f"s_mov_b64 exec, s[{sHM}:{sHM+1}]", ld, "s_mov_b64 exec, -1"]; rd += S(sHM, 2)
        else: b += ["s_nop 0", ld]
        wr = [tok] if isinstance(tok, str) else list(tok)
        P.add(Op(ld, "dma", rd, wr + ["m0", "scc"], port=4, bundle=b, **kw))

    def x_dma(self, t, **kw):
        buf = t & 1; tok = f"L:xb{buf}"
        tw = t if t < 3 else 0
        for sp in range(3):
            self.dma(f"s_add_u32 m0, s{sMA}, {XB[buf] + 1920*sp}", [f"s{sMA}"], v(vDa), sX, f"s{sWOFF+tw}", 128 * sp, tok, **kw)
        self.dma(f"s_add_u32 m0, s{sMB}, {XB[buf]}", [f"s{sMB}"], v(vDb), sX, f"s{sWOFB+tw}", 0, tok, **kw)
        self.dma(f"s_add_u32 m0, s{sMH}, {XB[buf]}", [f"s{sMH}"], v(vDb), sX, f"s{sWOFF+tw}", 128, tok, exec_half=True, **kw)

    def w_dma(self, k):
        P = self.p
        m, s = self.slots[k]; r = k % NRING
        if m == "o":
            srd = sWo
            if s < 4: regs = self.WA; so = 48 * s * 384
            else: regs = self.WB; so = (96 * (s - 4) + 32) * 384
        else:
            srd = sW; regs = self.WQ; so = s * 32 * 1152 + {"q": 0, "k": 384, "v": 768}[m]
        sreg = f"s{sT + 14 + (k & 1)}"
        P.salu(f"s_mov_b32 {sreg}, {so}", wr=[sreg])
        base = self.o.get("w_t0", 2600); step = self.o.get("w_dt", 77)
        for i in range(3):
            self.dma_n += 1
            self.dma(f"s_add_u32 m0, s{sRING}, {r*3072 + 1024*i}", [f"s{sRING}"], regs[i], srd, sreg, 0, f"L:ring{r}",
                     alat=700, arr=base + step * self.dma_n, bias=4000)

    def w_read(self, k):
        P = self.p
        m, s = self.slots[k]; r = k % NRING
        W = {"k": Wk, "v": Wv, "q": Wq, "o": Wo}[m]
        for j in range(3):
            for hf in range(2):
                if m == "o" and j < 2: ad = self.TR2; off = r * 3072 + hf * 1536 + 8 * j
                elif m == "o": ad = self.TR1; off = r * 3072 + hf * 1536 + 64
                else: ad = self.TR1; off = r * 3072 + hf * 1536 + 32 * j
                P.dsr("ds_read_b64_tr_b16", W(s, j).sub(2 * hf, 2), ad, off, [f"L:ring{r}"], bias=3000)
        if k + NRING < len(self.slots): self.w_dma(k + NRING)

    def bias_table(self, RP):
        P = self.p; L, N, G = self.L, self.N, self.G
        T1, T2, T3 = v(107), v(108), v(109)
        h = f"s{sH}"
        P.salu(f"s_mul_i32 s{sT+9}, {h}, 768", rd=[h], wr=[f"s{sT+9}"])
        P.salu(f"s_add_u32 s{sT+9}, s{sT+9}, {RPB}", rd=[f"s{sT+9}"], wr=[f"s{sT+9}", "scc"])
        rb = f"s{sT+9}"
        P.valu("v_lshlrev_b32", T1, ["2", L]); P.valu("v_add_u32", T1, [rb, T1])
        for i in range(3):
            P.valu("v_lshlrev_b32", RP[i], ["16", RP[i]])
            P.valu("v_mul_f32", RP[i], [f"s{sL2E}", RP[i]])
            P.dsw("ds_write_b32", T1, RP[i], 256 * i, ["L:rpb"])
        VA = [v(125 + i) for i in range(3)]
        RI, CI, J = v(110), v(111), v(112)
        for qt in range(3):
            P.valu("v_add_u32", J, [str(16 * qt), N]); self.tok_ri_ci(P, J, RI, CI, T2)
            P.valu("v_mul_u32_u24", T2, ["13", RI]); P.valu("v_add_u32", T2, [T2, CI])
            P.valu("v_add_u32", T2, ["0x54", T2]); P.valu("v_lshlrev_b32", T2, ["2", T2])
            P.valu("v_add_u32", VA[qt], [rb, T2])
        VBk = [v(136 + i) for i in range(12)]
        for kt in range(3):
            for r in range(4):
                P.valu("v_lshlrev_b32", J, ["2", G]); P.valu("v_add_u32", J, [str(16 * kt + r), J])
                self.tok_ri_ci(P, J, RI, CI, T2)
                P.valu("v_mul_u32_u24", T2, ["13", RI]); P.valu("v_add_u32", T2, [T2, CI])
                P.valu("v_lshlrev_b32", VBk[4 * kt + r], ["2", T2])
        AD = [v(148 + i) for i in range(8)]; DT = [v(160 + 4 * i, 4) for i in range(4)]
        c = 0
        for qt in range(3):
            for kt in range(3):
                d = DT[c % 4]
                for r in range(4):
                    ad = AD[(4 * c + r) % 8]
                    P.valu("v_sub_u32", ad, [VA[qt], VBk[4 * kt + r]])
                    P.dsr("ds_read_b32", d.sub(r), ad, 0, ["L:rpb"])
                P.dsw("ds_write_b128", v(vB), d, (qt * 3 + kt) * 1024, ["L:bias"])
                c += 1
        ER = v(156)
        P.valu("v_lshlrev_b32", ER, ["2", N]); P.valu("v_add_u32", ER, ["s49", ER])
        for qt in range(4):
            d = DT[c % 4].sub(0); ad = AD[c % 8]; c += 1
            if qt < 3: P.valu("v_subrev_u32", ad, [hex(4 * 84), VA[qt]])
            else: P.valu("v_mov_b32", ad, [rb]); P.valu("v_add_u32", ad, [hex(4 * 84), ad])
            P.dsr("ds_read_b32", d, ad, 0, ["L:rpb"])
            P.dsw("ds_write_b32", ER, d, 9216 + 80 * qt, ["L:bias"])
        P.valu("v_mov_b32", T2, [hex(NEG)]); P.valu("v_mov_b32", T3, ["s49"])
        for qt in range(4): P.dsw("ds_write_b32", T3, T2, 9216 + 80 * qt + 64, ["L:bias"])
        for kt in range(3):
            d = DT[c % 4]; c += 1
            for r in range(4):
                ad = AD[(4 * c + r) % 8]
                P.salu(f"s_add_u32 s{sT+10}, {rb}, {4*168}", rd=[rb], wr=[f"s{sT+10}", "scc"])
                P.valu("v_sub_u32", ad, [f"s{sT+10}", VBk[4 * kt + r]])
                P.dsr("ds_read_b32", d.sub(r), ad, 0, ["L:rpb"])
            P.dsw("ds_write_b128", v(vBq), d, 64 * kt, ["L:bias"])

    def xfrag(self, base, tt, s, tok):
        f = v(vXF + 4 * (self.xf_i % 3), 4); self.xf_i += 1
        ad = v(vXe) if s % 2 == 0 else v(vXo)
        self.p.dsr("ds_read_b128", f, ad, base + tt * 6144 + (s >> 1) * 2048, [tok])
        return f
    def cvt(self, dst, lo, hi, **kw): return self.p.valu("v_cvt_pk_bf16_f32", dst, [lo, hi], **kw)

    def e_proj(self):
        P = self.p
        ae, ao = v(vS), v(vS + 1)
        P.valu("v_add_u32", ae, [hex(XE), v(vXe)]); P.valu("v_add_u32", ao, [hex(XE), v(vXo)])
        ka = [v(vKVa + 4 * j, 4) for j in range(3)]; va = [v(vKVa + 12 + 4 * j, 4) for j in range(3)]
        qa = [v(vKVb + 4 * j, 4) for j in range(3)]
        for s in range(6):
            f = v(vXF + 4 * (self.xf_i % 3), 4); self.xf_i += 1
            P.dsr("ds_read_b128", f, ae if s % 2 == 0 else ao, (s >> 1) * 2048, ["L:xe"])
            for j in range(3): P.mfma(ka[j], Wk(s, j), f, ka[j] if s else "0")
            for j in range(3): P.mfma(va[j], f, Wv(s, j), va[j] if s else "0")
            for j in range(3): P.mfma(qa[j], Wq(s, j), f, qa[j] if s else "0")
        self.k_cvt(3, ka); self.v_cvt(3, va); self.q_cvt(v(vQ + 16, 8), qa)
    def k_cvt(self, tt, ka):
        kb = vK + 8 * tt
        for j in range(3):
            for u in range(2): self.cvt(v(kb + 2 * j + u), ka[j].sub(2 * u), ka[j].sub(2 * u + 1))
    def v_cvt(self, tt, va):
        for j in range(3):
            for u in range(2): self.cvt(v(vV + 8 * j + 2 * tt + u), va[j].sub(2 * u), va[j].sub(2 * u + 1))
    def q_cvt(self, q, qa):
        P = self.p
        for j in range(3):
            for r in range(4): P.valu("v_mul_f32", qa[j].sub(r), [f"s{sC}", qa[j].sub(r)])
            for u in range(2): self.cvt(q.sub(2 * j + u), qa[j].sub(2 * u), qa[j].sub(2 * u + 1))

    def kv_proj(self, t, tt):
        P = self.p
        acc = vKVa if tt % 2 == 0 else vKVb
        ka = [v(acc + 4 * j, 4) for j in range(3)]; va = [v(acc + 12 + 4 * j, 4) for j in range(3)]
        for s in range(6):
            f = self.xfrag(XB[t & 1], tt, s, f"L:xb{t&1}")
            for j in range(3): P.mfma(ka[j], Wk(s, j), f, ka[j] if s else "0")
            for j in range(3): P.mfma(va[j], f, Wv(s, j), va[j] if s else "0")
        self.k_cvt(tt, ka); self.v_cvt(tt, va)

    def q_proj(self, t, qt):
        P = self.p
        qa = [v(vKVb + 4 * j, 4) for j in range(3)]
        for s in range(6):
            f = self.xfrag(XB[t & 1], qt, s, f"L:xb{t&1}")
            for j in range(3): P.mfma(qa[j], Wq(s, j), f, qa[j] if s else "0")
        q = v(vQ + 8 * (qt & 1), 8)
        if qt != 1: P.valu("v_mov_b32", q.sub(6), [v(vYq + (qt >> 1))])
        self.q_cvt(q, qa)
        return q

    def attn(self, t, qt, q):
        P = self.p; o = self.o
        sb = vS + 16 * (self.s_i % 2); self.s_i += 1
        Sg = v(sb, 16)
        for kt in range(3):
            if qt < 3: P.dsr("ds_read_b128", Sg.sub(4 * kt, 4), v(vB), (qt * 3 + kt) * 1024, ["L:bias"])
            else: P.dsr("ds_read_b128", Sg.sub(4 * kt, 4), v(vBq), 64 * kt, ["L:bias"])
        P.dsr("ds_read_b32", Sg.sub(12), v(vBE), 9216 + 80 * qt, ["L:bias"])
        for kt in range(4):
            kk = v(vK + 8 * kt, 8); d = Sg.sub(4 * kt, 4)
            P.mfma(d, kk.sub(0, 4), q.sub(0, 4), d, bias=300)
            P.mfma(d, kk.sub(4, 4), q.sub(4, 4), d, bias=300)
        s_ = [Sg.sub(i) for i in range(13)]
        if not o.get("fast"):
            M, T = Sg.sub(13), Sg.sub(14)
            P.valu("v_max3_f32", M, [s_[0], s_[1], s_[2]])
            P.valu("v_max3_f32", T, [s_[3], s_[4], s_[5]])
            P.valu("v_max3_f32", M, [M, s_[6], s_[7]])
            P.valu("v_max3_f32", T, [T, s_[8], s_[9]])
            P.valu("v_max3_f32", M, [M, s_[10], s_[11]])
            P.valu("v_max3_f32", M, [M, T, s_[12]])
            for sw in ("v_permlane32_swap_b32", "v_permlane16_swap_b32"):
                P.valu("v_mov_b32", T, [M])
                P.add(Op(f"{sw} {T.t()}, {M.t()}", "trans", T.regs() + M.regs(), T.regs() + M.regs()))
                P.valu("v_max_f32", M, [M, T])
            for i in range(13): P.valu("v_sub_f32", s_[i], [s_[i], M])
        for i in range(13): P.valu("v_exp_f32", s_[i], [s_[i]], kind="trans")
        for u in range(4): self.cvt(Sg.sub(u), s_[2 * u], s_[2 * u + 1])
        self.cvt(Sg.sub(8), s_[8], s_[9]); self.cvt(Sg.sub(9), s_[10], s_[11])
        self.cvt(Sg.sub(10), s_[12], "0"); P.valu("v_mov_b32", Sg.sub(11), ["0"])
        P0, P1 = Sg.sub(0, 4), Sg.sub(8, 4)
        oa = [v(vOA + 4 * j, 4) for j in range(3)]; sm = v(vOA + 12, 4)
        P.mfma(sm, v(vONE, 4), P0, "0", bias=200); P.mfma(sm, v(vONE, 4), P1, sm, bias=200)
        for j in range(3):
            vv = v(vV + 8 * j, 8)
            P.mfma(oa[j], vv.sub(0, 4), P0, "0", bias=200); P.mfma(oa[j], vv.sub(4, 4), P1, oa[j], bias=200)
        Rc = sm.sub(1)
        P.valu("v_rcp_f32", Rc, [sm.sub(0)], kind="trans")
        if o.get("fast"):
            P.valu("v_min_f32", v(vLmin), [v(vLmin), sm.sub(0)]); P.valu("v_max_f32", v(vLmax), [v(vLmax), sm.sub(0)])
        for j in range(3):
            for r in range(4): P.valu("v_mul_f32", oa[j].sub(r), [oa[j].sub(r), Rc])
        o4 = v(vOA, 4); o2 = v(vOA + 8, 2)
        for u in range(4): self.cvt(o4.sub(u), v(vOA + 2 * u), v(vOA + 2 * u + 1))
        for u in range(2): self.cvt(o2.sub(u), v(vOA + 8 + 2 * u), v(vOA + 9 + 2 * u))
        if qt < 3:
            off = OB[t & 1] - OE + qt * 6144; tok = f"L:ob{t&1}"
            P.dsw("ds_write_b128", v(vOw4), o4, off, [tok]); P.dsw("ds_write_b64", v(vOw2), o2, off, [tok])
        else:
            m = 0x00010001 << (4 * t)
            b = [f"s_mov_b32 exec_lo, {hex(m)}", f"s_mov_b32 exec_hi, {hex(m)}",
                 f"ds_write_b128 {v(vOw4).t()}, {o4.t()}", f"ds_write_b64 {v(vOw2).t()}, {o2.t()}", "s_mov_b64 exec, -1"]
            P.add(Op(b[2], "dsw", V(vOw4) + V(vOw2) + o4.regs() + o2.regs() + ["exec"], ["L:oe"], port=32, bundle=b, alat=(0, 2)))

    def out_proj(self, t, tt):
        P = self.p
        acc = [v(vKVb + 12 + 4 * j, 4) for j in range(3)]
        base = (OB[t & 1] - OE + tt * 6144) if tt < 3 else 0
        tok = f"L:ob{t&1}" if tt < 3 else "L:oe"
        for s in range(6):
            f = v(vOF + 4 * (self.of_i % 3), 4); self.of_i += 1
            P.dsr("ds_read_b128", f, v(vOr), base + s * 1024, [tok])
            for j in range(3): P.mfma(acc[j], Wo(s, j), f, acc[j] if s else "0")
        b0 = vKVb + 12
        o4 = v(b0, 4); o2 = v(b0 + 8, 2); t2 = v(b0 + 10)
        for u in range(4): self.cvt(o4.sub(u), v(b0 + 2 * u), v(b0 + 2 * u + 1))
        for u in range(2): self.cvt(o2.sub(u), v(b0 + 8 + 2 * u), v(b0 + 9 + 2 * u))
        if tt < 3: so = v(vSt + tt); soff = f"s{sWOFF+t}" if t in (1, 2) else "0"
        else: so = self.e_store_off(); soff = "0"
        P.valu("v_add_u32", t2, [so, v(vD2)])
        fl = self.o.get("stflags", "")
        rdS = S(sO, 4) + ([soff] if soff != "0" else []) + ["exec"]
        P.add(Op(f"buffer_store_dwordx4 {o4.t()}, {so.t()}, s[{sO}:{sO+3}], {soff} offen {fl}".rstrip(), "vst", o4.regs() + so.regs() + rdS, [], port=20))
        P.add(Op(f"buffer_store_dwordx2 {o2.t()}, {t2.t()}, s[{sO}:{sO+3}], {soff} offen {fl}".rstrip(), "vst", o2.regs() + t2.regs() + rdS, [], port=12))

    def e_store_off(self):
        P = self.p
        D, T1, T2, Lr = v(vS), v(vS + 1), v(vS + 2), v(vS + 3)
        P.valu("v_lshrrev_b32", Lr, ["4", v(vOr)])
        P.valu("v_subrev_u32", Lr, [hex(OE >> 4), Lr])
        P.valu("v_bfe_u32", T1, [Lr, "2", "2"])
        P.valu("v_mul_u32_u24", D, ["7", T1]); P.valu("v_add_u32", D, [f"s{sT+1}", D]); P.valu("v_add_u32", D, ["6", D])
        P.valu("v_subrev_u32", T2, ["224", D]); P.valu("v_min_u32", D, [D, T2]); P.valu("v_mul_u32_u24", D, ["384", D])
        P.salu(f"s_add_u32 s{sT+10}, s{sT}, 6", rd=[f"s{sT}"], wr=[f"s{sT+10}", "scc"])
        P.salu(f"s_cmp_ge_u32 s{sT+10}, 224", rd=[f"s{sT+10}"], wr=["scc"])
        P.salu(f"s_cselect_b32 s{sT+11}, 224, 0", rd=["scc"], wr=[f"s{sT+11}"])
        P.salu(f"s_sub_u32 s{sT+10}, s{sT+10}, s{sT+11}", rd=[f"s{sT+10}", f"s{sT+11}"], wr=[f"s{sT+10}", "scc"])
        P.salu(f"s_mul_i32 s{sT+10}, s{sT+10}, {ROWB}", rd=[f"s{sT+10}"], wr=[f"s{sT+10}"])
        P.salu(f"s_mul_i32 s{sT+11}, s{sH}, 96", rd=[f"s{sH}"], wr=[f"s{sT+11}"])
        P.salu(f"s_add_u32 s{sT+10}, s{sT+10}, s{sT+11}", rd=[f"s{sT+10}", f"s{sT+11}"], wr=[f"s{sT+10}", "scc"])
        P.valu("v_add_u32", D, [f"s{sT+10}", D])
        P.valu("v_lshrrev_b32", T1, ["4", Lr]); P.valu("v_lshl_add_u32", D, [T1, "4", D])
        P.valu("v_and_b32", T1, ["3", Lr]); P.valu("v_cmp_eq_u32", "vcc", ["0", T1])
        P.valu("v_mov_b32", T2, [hex(OOB)]); P.valu("v_cndmask_b32", D, [T2, D, "vcc"])
        return D

    def set_vBE(self, t):
        P = self.p
        T = v(vSpare)
        P.valu("v_lshrrev_b32", T, ["4", v(vOr)]); P.valu("v_subrev_u32", T, [hex(OE >> 4), T])
        P.valu("v_lshrrev_b32", v(vBE), ["4", T]); P.valu("v_cmp_eq_u32", "vcc", [str(t), v(vBE)])
        P.valu("v_and_b32", T, ["15", T]); P.valu("v_mov_b32", v(vBE), ["16"])
        P.valu("v_cndmask_b32", T, [v(vBE), T, "vcc"])
        P.valu("v_lshlrev_b32", T, ["2", T]); P.valu("v_add_u32", v(vBE), ["s49", T])

    def wrap_fix(self, regs):
        P = self.p; T = v(vSpare)
        for reg, bit in regs:
            P.valu("v_bfe_i32", T, [v(vWrap), str(bit), "1"]); P.valu("v_and_b32", T, [hex(ROWB), T])
            P.valu("v_sub_u32", reg, [reg, T]); P.valu("v_add_u32", reg, [hex(3 * 2688), reg])
    def kext_fix(self):
        P = self.p; T = v(vSpare)
        for kt in range(4):
            P.valu("v_bfe_i32", T, [v(vWrap), str(5 + kt), "1"])
            P.valu("v_and_b32", v(vK + 8 * kt + 6), [hex(MASKPK), T])

    def barrier(self, pub_w=(), pub_r=(), note=""):
        toks = list(pub_w) + list(pub_r)
        b = None
        if self.o.get("stamp"):
            b = ["s_barrier", f"s_memtime s[{self.stamp_s}:{self.stamp_s+1}]"]; self.stamp_s += 2
            print(f"; stamp after barrier {note}", file=sys.stderr)
        self.p.add(Op("s_barrier", "bar", toks, toks, pub_w=tuple(pub_w), pub_r=tuple(pub_r), note=note, bundle=b))

    def dump(self, regs, label=""):
        P = self.p
        for r in regs:
            cls = r[0]; i = int(r[1:])
            T = v(vSpare)
            if cls == "a": P.add(Op(f"v_accvgpr_read_b32 v{vSpare}, a{i}", "valu", [r], [f"v{vSpare}"])); src = T
            else: src = v(i)
            self.p.salu(f"s_mov_b32 s84, {self.dbg_n*256}", wr=["s84"])
            P.add(Op(f"buffer_store_dword {src.t()}, v{DBGA}, s[80:83], s84 offen", "vst", src.regs() + [f"v{DBGA}", "s84"] + S(80, 4) + ["exec"], [], port=8))
            print(f"; dump slot {self.dbg_n}: {label} {r}", file=sys.stderr)
            self.dbg_n += 1

    def main(self):
        P = self.p; o = self.o
        self.s_i = 0
        nsl = len(self.slots)
        wread = iter(range(nsl))
        for k in range(nsl): self.w_read(k)
        self.barrier(pub_w=["L:xe", "L:xb0"], note="b0")
        self.set_vBE(0)
        self.e_proj()
        for t in range(4):
            if t: self.set_vBE(t)
            if t == 3: self.kext_fix()
            for tt in range(3): self.kv_proj(t, tt)
            for qt in range(4):
                q = self.q_proj(t, qt) if qt < 3 else v(vQ + 16, 8)
                if qt == 2:
                    pw = [f"L:xb{(t+1)&1}"] if t < 3 else []
                    pr = [f"L:xb{t&1}"] + (["L:xe"] if t == 0 else [])
                    if t < 3:
                        self.barrier(pub_w=pw, pub_r=pr, note=f"mid{t}")
                        if t + 2 < 4:
                            if t + 2 == 3: self.wrap_fix([(v(vDa), 0), (v(vDb), 1)])
                            self.x_dma(t + 2, alat=1500)
                self.attn(t, qt, q)
                if t > 0 and qt < 3:
                    if t - 1 == 0 or True: pass
                    self.out_proj(t - 1, qt)
            pr = [f"L:ob{(t+1)&1}"] + ([f"L:ring{r}" for r in range(NRING)] if t == 0 else [])
            self.barrier(pub_w=[f"L:ob{t&1}", "L:oe"], pub_r=pr, note=f"end{t}")
        self.wrap_fix([(v(vSt + tt), 2 + tt) for tt in range(3)])
        for tt in range(3): self.out_proj(3, tt)
        self.out_proj(3, 3)

DBGA = 18

def build(opts):
    k = K(opts)
    k.entry(); k.setup(); k.main()
    em = Emitter()
    for i, op in enumerate(k.pre.ops): op.idx = i
    linear(k.pre.ops, em)
    em.pos = {}
    pre_n = len(em.out)
    if opts.get("sched", 1):
        em, end, times = schedule(k.p.ops, em, verbose=True, lds_lat=opts.get("lds_lat", L_DS))
    else:
        linear(k.p.ops, em)
    if opts.get("stamp"):
        em.out.insert(0, ("s_memtime s[76:77]", None)); em.out.insert(1, ("s_memrealtime s[18:19]", None))
        em.out.insert(pre_n + 2, ("s_memtime s[78:79]", None))
        n = k.stamp_s
        tail = [f"s_memtime s[{n}:{n+1}]", "s_waitcnt vmcnt(0)", f"s_memtime s[{n+2}:{n+3}]", "s_memrealtime s[100:101]", "s_waitcnt lgkmcnt(0)",
                "s_load_dwordx2 s[4:5], s[0:1], 64", "s_waitcnt lgkmcnt(0)", "s_mov_b32 s6, 0x1000000", "s_mov_b32 s7, 0x20000",
                "s_and_b32 s5, s5, 0xffff", "s_lshl_b32 s8, s2, 2", f"s_add_u32 s8, s8, s{sH}", "s_lshl_b32 s8, s8, 7", "v_mov_b32 v1, s8"]
        vals = list(range(76, n + 4, 2))
        for i, r in enumerate(vals):
            tail += [f"s_sub_u32 s9, s{r}, s76", "v_mov_b32 v2, s9", f"buffer_store_dword v2, v1, s[4:7], 0 offen offset:{4*i}"]
        tail += ["s_sub_u32 s9, s100, s18", "v_mov_b32 v2, s9", f"buffer_store_dword v2, v1, s[4:7], 0 offen offset:{4*len(vals)}"]
        tail += ["v_mov_b32 v2, s18", f"buffer_store_dword v2, v1, s[4:7], 0 offen offset:{4*len(vals)+4}"]
        tail += ["v_mov_b32 v2, s100", f"buffer_store_dword v2, v1, s[4:7], 0 offen offset:{4*len(vals)+8}"]
        print(f"; {len(vals)} cycle stamps, then realtime delta, start, end", file=sys.stderr)
        if opts.get("stamp") == 2:
            tail = tail[:5] + ["s_load_dwordx2 s[4:5], s[0:1], 56", "s_waitcnt lgkmcnt(0)", "s_mov_b32 s6, 256", "s_mov_b32 s7, 0x20000",
                    "s_and_b32 s5, s5, 0xffff", "v_mov_b32 v1, 0", "v_mov_b32 v2, s100", "s_mov_b32 exec_hi, 0", "s_mov_b32 exec_lo, 1",
                    "buffer_atomic_umax v2, v1, s[4:7], 0 offen", "s_not_b32 s9, s18", "v_mov_b32 v3, s9",
                    "buffer_atomic_umax v3, v1, s[4:7], 0 offen offset:4",
                    f"s_lshl_b32 s8, s2, 2", f"s_add_u32 s8, s8, s{sH}", "s_cmp_lg_u32 s8, 0", "s_cbranch_scc1 L_nodbg"]
            for i, r in enumerate(vals[1:]):
                tail += [f"s_sub_u32 s9, s{r}, s76", "v_mov_b32 v2, s9", f"buffer_store_dword v2, v1, s[4:7], 0 offen offset:{8+4*i}"]
            tail += ["s_sub_u32 s9, s100, s18", "v_mov_b32 v2, s9", f"buffer_store_dword v2, v1, s[4:7], 0 offen offset:{8+4*(len(vals)-1)}", "L_nodbg:"]
        for x in tail: em.out.append((x, None))
    lines = []
    for txt, op in em.out: lines.append(txt if txt.endswith(":") else "    " + txt)
    body = "\n".join(lines)
    name = "standalone__window_attn_swin__vision_kernel"
    hdr = open("standalone__window_attn_swin__vision.s.ref").read().split("; Override launch")[0]
    txt = hdr + f"""; Override launch geometry by editing the next line (default: block=256,
; grid=ceil(out_elems/256), lds=0). Harness parses it; keep it on one line.
; @launch grid=(256,1,1) block=(256,1,1) lds={LDS_TOTAL}
.amdgcn_target "amdgcn-amd-amdhsa--gfx950"
.text
.globl {name}
.p2align 8
.type {name},@function
{name}:
    s_cmp_ge_u32 s2, 256
    s_cbranch_scc0 L_work
    s_endpgm
L_work:
{body}
    s_endpgm
L_codeend:
.section .rodata,"a"
.p2align 6
.amdhsa_kernel {name}
  .amdhsa_next_free_vgpr 512
  .amdhsa_next_free_sgpr 102
  .amdhsa_accum_offset 256
  .amdhsa_group_segment_fixed_size 0
  .amdhsa_kernarg_size 72
  .amdhsa_user_sgpr_count 2
  .amdhsa_user_sgpr_kernarg_segment_ptr 1
  .amdhsa_system_sgpr_workgroup_id_x 1
  .amdhsa_float_denorm_mode_32 3
.end_amdhsa_kernel
"""
    return txt

if __name__ == "__main__":
    import argparse
    ap = argparse.ArgumentParser()
    ap.add_argument("-o", default="out.s")
    ap.add_argument("opts", nargs="*")
    a_ = ap.parse_args()
    opts = {}
    for x in a_.opts:
        kk, vv = x.split("=")
        try: vv = int(vv)
        except ValueError: pass
        opts[kk] = vv
    open(a_.o, "w").write(build(opts))
```
